```python
import torch

def _softmax(x, axis=-1):
    return torch.softmax(x, dim=axis)
def _gelu(x):
    return torch.nn.functional.gelu(x, approximate="tanh")
def _silu(x):
    return torch.nn.functional.silu(x)
def _sigmoid(x):
    return torch.sigmoid(x)
def _layernorm(x, axis=-1, eps=1e-5):
    m = x.mean(dim=axis, keepdim=True)
    v = x.var(dim=axis, keepdim=True, unbiased=False)
    return (x - m) / torch.sqrt(v + eps)
def _scatter_add(tgt, idx, src, axis=0):
    return tgt.clone().index_add_(axis, idx, src)
def _segment_sum(src, seg, n):
    out = torch.zeros((n,) + src.shape[1:], dtype=src.dtype)
    return out.index_add_(0, seg, src)
def _pad(x, pw):
    flat = tuple(v for pair in reversed(pw) for v in pair)
    return torch.nn.functional.pad(x, flat)

kernel_name = 'parallel_sum__mha_block_cached__geglu_ffn__decode'

def setup_inputs():

    _w = (lambda a: (lambda t: t.to(torch.bfloat16) if t.is_floating_point() else t)(torch.as_tensor(a)))
    def _A_setup():
        B, Sq, D = 2, 1, 576
        H, Sk, Dh = 32, 8192, 128
        return {
            "x": _w((lambda *s: torch.randn(*s, dtype=torch.bfloat16) * 0.05)(B, Sq, D)),
            "k_cache": _w((lambda *s: torch.randn(*s, dtype=torch.bfloat16) * 3.2)(B, H, Sk, Dh)),
            "v_cache": _w((lambda *s: torch.randn(*s, dtype=torch.bfloat16) * 1.6)(B, H, Sk, Dh)),
            "wq": _w((lambda *s: torch.randn(*s, dtype=torch.bfloat16) * 3.2)(D, H * Dh) * (D ** -0.5)),
            "wo": _w((lambda *s: torch.randn(*s, dtype=torch.bfloat16) * 1.6)(H * Dh, D) * ((H * Dh) ** -0.5)),
        }
    _A_in = _A_setup()

    def _B_setup():
        B, S, D, F = 2, 1, 576, 4608
        return {
            "x": _w((lambda *s: torch.randn(*s, dtype=torch.bfloat16) * 0.05)(B, S, D)),
            "w_gate": _w((lambda *s: torch.randn(*s, dtype=torch.bfloat16) * 0.05)(D, F)),
            "w_up": _w((lambda *s: torch.randn(*s, dtype=torch.bfloat16) * 0.05)(D, F)),
            "w_down": _w((lambda *s: torch.randn(*s, dtype=torch.bfloat16) * 0.05)(F, D)),
        }
    _B_in = _B_setup()

    return {
        "A_x": _A_in["x"],
        "A_k_cache": _A_in["k_cache"],
        "A_v_cache": _A_in["v_cache"],
        "A_wq": _A_in["wq"],
        "A_wo": _A_in["wo"],
        "B_x": _B_in["x"],
        "B_w_gate": _B_in["w_gate"],
        "B_w_up": _B_in["w_up"],
        "B_w_down": _B_in["w_down"],
    }

def reference(A_x, A_k_cache, A_v_cache, A_wq, A_wo, B_x, B_w_gate, B_w_up, B_w_down):
    def _A_ref(x, k_cache, v_cache, wq, wo):
        B, Sq, D = x.shape
        H, Dh = 32, 128
        q = (lambda x, *d: x.permute(*d))((x @ wq).reshape(B, Sq, H, Dh), 0, 2, 1, 3)
        scores = torch.einsum("bhqd,bhkd->bhqk", q, k_cache) * (Dh ** -0.5)
        p = _softmax(scores, axis=-1)
        o = torch.einsum("bhqk,bhkd->bhqd", p, v_cache)
        return (lambda x, *d: x.permute(*d))(o, 0, 2, 1, 3).reshape(B, Sq, H * Dh) @ wo

    def _B_ref(x, w_gate, w_up, w_down):
        return (_gelu(x @ w_gate) * (x @ w_up)) @ w_down

    x = A_x
    xn = _layernorm(x, axis=-1)
    return x + _A_ref(xn, A_k_cache, A_v_cache, A_wq, A_wo) + _B_ref(xn, B_w_gate, B_w_up, B_w_down)
```

```python
import struct, sys, argparse

KN = "parallel_sum__mha_block_cached__geglu_ffn__decode_kernel"
def f32(x): return struct.unpack("<I", struct.pack("<f", x))[0]
def hx(x): return f"0x{x:08x}"

HEADER = """; Kernarg layout for this problem (96 bytes, ptrs only, base s[0:1]):
;   offset  32: d_in[4] A_wo  shape=(4096, 576) dtype=bfloat16 strides=(1152, 2) contiguous=True
;   offset  88: d_ws      536870912 bytes workspace
"""

WS_Y   = 0x100000
WS_FP  = 0x1A0000
WS_MLW = 0x200000
WS_SIZE = 0x210000
SENT = 0xFFFFFFFF
L_XT = 0; L_QP = 4096; L_QF = 8192; L_YP = 8704; L_T = 29184; L_H = 34432; L_END = 36864
LOG2E = 1.4426950408889634
SCALE = 0.08838834764831845
SPIN_MAX = 200000

class E:
    def __init__(s):
        s.o = []; s.vm = []; s.lbl = 0
    def __call__(s, t):
        for l in t.strip("\n").split("\n"): s.o.append("  " + l.strip() if not l.strip().endswith(":") else l.strip())
    def vmem(s, t, tag=None):
        s(t); s.vm.append(tag)
    def wait(s, tag):
        idx = max(i for i, x in enumerate(s.vm) if x == tag)
        n = len(s.vm) - 1 - idx
        assert n <= 63, n
        s(f"s_waitcnt vmcnt({n})")
        s.vm = s.vm[idx+1:]
    def wait_all(s):
        s("s_waitcnt vmcnt(0)"); s.vm = []
    def label(s, p):
        s.lbl += 1; return f"L_{p}_{s.lbl}"

def q(r): return f"v[{r}:{r+3}]"
def d2(r): return f"v[{r}:{r+1}]"
DPPF = "row_mask:0xf bank_mask:0xf"

def allreduce(e, op, v, t, rors=(8, 4, 2, 1), x16=True, x32=True):
    for r in rors:
        e("s_nop 1")
        e(f"v_{op}_f32_dpp v{v}, v{v}, v{v} row_ror:{r} {DPPF}")
    for en, ins in ((x16, "v_permlane16_swap_b32"), (x32, "v_permlane32_swap_b32")):
        if not en: continue
        e(f"v_mov_b32 v{t}, v{v}")
        e("s_nop 1")
        e(f"{ins} v{v}, v{t}")
        e("s_nop 1")
        e(f"v_{op}_f32 v{v}, v{v}, v{t}")

def bf16r(e, dst, src):
    e(f"v_cvt_pk_bf16_f32 v{dst}, v{src}, v{src}")
    e(f"v_and_b32 v{dst}, 0xffff0000, v{dst}")

def ln_stats(e, xa, tmp, vmaskhi, mean_bf, sd, rinv, t1):
    for k in range(5):
        e(f"v_lshlrev_b32 v{tmp[2*k]}, 16, v{xa[k]}")
        e(f"v_and_b32 v{tmp[2*k+1]}, 0xffff0000, v{xa[k]}")
    e(f"v_add_f32 v{mean_bf}, v{tmp[0]}, v{tmp[1]}")
    for k in range(2, 10): e(f"v_add_f32 v{mean_bf}, v{mean_bf}, v{tmp[k]}")
    allreduce(e, "add", mean_bf, t1)
    e(f"v_mul_f32 v{mean_bf}, {hx(f32(1.0/576))}, v{mean_bf}")
    for k in range(10): e(f"v_sub_f32 v{tmp[k]}, v{tmp[k]}, v{mean_bf}")
    e(f"v_mul_f32 v{tmp[8]}, v{tmp[8]}, v{vmaskhi}")
    e(f"v_mul_f32 v{tmp[9]}, v{tmp[9]}, v{vmaskhi}")
    e(f"v_mul_f32 v{sd}, v{tmp[0]}, v{tmp[0]}")
    for k in range(1, 10): e(f"v_fmac_f32 v{sd}, v{tmp[k]}, v{tmp[k]}")
    allreduce(e, "add", sd, t1)
    e(f"v_mul_f32 v{sd}, {hx(f32(1.0/576))}, v{sd}")
    bf16r(e, sd, sd)
    e(f"v_add_f32 v{sd}, {hx(f32(1e-5))}, v{sd}")
    bf16r(e, sd, sd)
    e(f"v_sqrt_f32 v{sd}, v{sd}")
    e("s_nop 0")
    bf16r(e, sd, sd)
    e(f"v_rcp_f32 v{rinv}, v{sd}")
    bf16r(e, mean_bf, mean_bf)

def ln_norm(e, dst, x, mean_bf, sd, rinv, t0, t1):
    e(f"v_sub_f32 v{x}, v{x}, v{mean_bf}")
    bf16r(e, x, x)
    e(f"v_mul_f32 v{t0}, v{x}, v{rinv}")
    e(f"v_fma_f32 v{t1}, -v{t0}, v{sd}, v{x}")
    e(f"v_fma_f32 v{t0}, v{t1}, v{rinv}, v{t0}")
    e(f"v_cvt_pk_bf16_f32 v{dst}, v{t0}, v{t0}")

def masks(e, M, lane, t0, t1):
    e(f"v_and_b32 v{t0}, 1, v{lane}")
    e(f"v_lshlrev_b32 v{t0}, 4, v{t0}")
    e(f"v_mov_b32 v{t1}, 0xffff")
    e(f"v_lshlrev_b32 v{t1}, v{t0}, v{t1}")
    e(f"v_bfe_u32 v{t0}, v{lane}, 1, 2")
    for w in range(4):
        e(f"v_cmp_eq_u32 vcc, {w}, v{t0}")
        e("s_nop 1")
        e(f"v_cndmask_b32 v{M[w]}, 0, v{t1}, vcc")

def srd(e, s, lo, hi, size):
    e(f"s_mov_b32 s{s}, s{lo}\ns_mov_b32 s{s+1}, s{hi}\ns_mov_b32 s{s+2}, {hx(size)}\ns_mov_b32 s{s+3}, 0x20000")

def gen(name, NR=11, stamps=False, nt_w=True, NFFN=72, fsel="first", wo_start=1, wo_per=2, k_early=0, NF=24, k_late=False):
    e = E()
    ntw = " nt" if nt_w else ""
    e.o.append(HEADER.rstrip("\n"))
    e.o.append(f"; @launch grid=(256,1,1) block=(576,1,1) lds={L_END}")
    e.o.append('.amdgcn_target "amdgcn-amd-amdhsa--gfx950"\n.text')
    e.o.append(f".globl {KN}\n.p2align 8\n.type {KN},@function\n{KN}:")
    SK, SV, SW, SX, SWS, SWO = 28, 32, 36, 40, 44, 48
    sH, sB, sS, sBH, sT, sKV, sT2, sSPIN, sROW = 52, 53, 54, 55, 56, 57, 58, 59, 60
    sEX = 62
    sST = 64
    def stamp(i):
        if stamps: e(f"s_memrealtime s[{sST+2*i}:{sST+2*i+1}]")
    def astamp(i):
        if stamps: e(f"s_memrealtime s[{sST+2+2*i}:{sST+2*i+3}]")
    def astore(n, vt):
        e(f"s_lshl_b32 s{sT}, s2, 6\ns_add_u32 s{sT}, s{sT}, 16384\nv_mov_b32 v1, s{sT}")
        for i in range(n):
            e(f"v_mov_b32 v2, s{sST+2+2*i}\nv_mov_b32 v3, s{sST+3+2*i}")
            e(f"buffer_store_dwordx2 v[2:3], v1, s[{SWS}:{SWS+3}], 0 offen offset:{8*i}\ns_nop 1")
    e("s_cmp_ge_u32 s2, 256\ns_cbranch_scc1 L_end")
    stamp(0)
    e("s_load_dwordx16 s[4:19], s[0:1], 0\ns_load_dwordx8 s[20:27], s[0:1], 64")
    e("v_lshrrev_b32 v1, 6, v0\nv_and_b32 v0, 63, v0")
    e(f"s_and_b32 s{sH}, s2, 7\ns_lshl_b32 s{sH}, s{sH}, 2\ns_bfe_u32 s{sT}, s2, 0x20003\ns_add_u32 s{sH}, s{sH}, s{sT}")
    e("v_readfirstlane_b32 s3, v1")
    e(f"s_bfe_u32 s{sB}, s2, 0x10005\ns_lshr_b32 s{sS}, s2, 6")
    e(f"s_lshl_b32 s{sBH}, s{sB}, 5\ns_add_u32 s{sBH}, s{sBH}, s{sH}")
    e(f"s_lshl_b32 s{sROW}, s{sBH}, 2\ns_add_u32 s{sROW}, s{sROW}, s{sS}")
    e(f"s_mov_b32 s{sSPIN}, 0")
    e("s_waitcnt lgkmcnt(0)")
    srd(e, SWS, 26, 27, WS_SIZE)
    e("s_cmp_eq_u32 s3, 8\ns_cbranch_scc1 L_aux")

    LANE = 0; VKV = 1; M = [2, 3, 4, 5]; QF = 6; T0 = 10; T1 = 11
    ACC = 12; X = 16; Y = 20; S0 = 24; W0 = 40; R0 = 120
    MX = R0 + 44; assert NR <= 11; LS = MX + 1; assert MX % 2 == 0
    VO = LS + 1; FL = VO + 1
    NV = FL + 1
    assert NV <= 168, NV
    srd(e, SK, 6, 7, 0x8000000); srd(e, SV, 8, 9, 0x8000000); srd(e, SW, 10, 11, 576*8192); srd(e, SWO, 12, 13, 4096*1152)
    e(f"s_mul_i32 s{sT}, s{sB}, 1152\ns_add_u32 s{SX}, s4, s{sT}\ns_addc_u32 s{SX+1}, s5, 0\ns_mov_b32 s{SX+2}, 1152\ns_mov_b32 s{SX+3}, 0x20000")
    XA = [X, X+1, X+2, X+3, Y]; XO = Y+1
    e(f"v_lshlrev_b32 v{T0}, 2, v{LANE}")
    e(f"s_mul_i32 s{sT}, s3, 144")
    e(f"v_add_u32 v{T1}, s{sT}, v{T0}")
    for k in range(5): e.vmem(f"buffer_load_dword v{XA[k]}, v{T0}, s[{SX}:{SX+3}], 0 offen offset:{256*k}", "x")
    e.vmem(f"buffer_load_dword v{XO}, v{T1}, s[{SX}:{SX+3}], 0 offen", "x")
    e(f"v_lshrrev_b32 v{VO}, 4, v{LANE}")
    e(f"v_mul_u32_u24 v{VO}, {18*8192}, v{VO}")
    e(f"v_and_b32 v{FL}, 15, v{LANE}")
    e(f"v_lshl_add_u32 v{VO}, v{FL}, 4, v{VO}")
    e(f"s_mul_i32 s{sT}, s3, {72*8192}\ns_lshl_b32 s{sT2}, s{sH}, 8\ns_add_u32 s{sT}, s{sT}, s{sT2}")
    for n in range(18):
        e.vmem(f"buffer_load_dwordx4 {q(W0+4*n)}, v{VO}, s[{SW}:{SW+3}], s{sT} offen{ntw}", f"wq{n}")
        if n < 17: e(f"s_add_u32 s{sT}, s{sT}, 8192")
    e(f"v_lshlrev_b32 v{VKV}, 4, v{LANE}")
    e(f"s_lshl_b32 s{sKV}, s{sBH}, 21\ns_lshl_b32 s{sT}, s{sS}, 19\ns_add_u32 s{sKV}, s{sKV}, s{sT}\ns_lshl_b32 s{sT}, s3, 12\ns_add_u32 s{sKV}, s{sKV}, s{sT}")
    NL = 128
    def slot(n): return S0 + 4*n if n < 4 else R0 + 4*((n-4) % NR)
    issued = [0]
    def kv_issue():
        n = issued[0]
        if n >= NL: return
        issued[0] += 1
        t, i = (n % 64) // 4, n % 4
        s = SK if n < 64 else SV
        if i == 0: e(f"s_add_u32 s{sT2}, s{sKV}, {t*32768}")
        e.vmem(f"buffer_load_dwordx4 {q(slot(n))}, v{VKV}, s[{s}:{s+3}], s{sT2} offen offset:{1024*i} nt", f"kv{n}")
    def kv_issue2():
        n = issued[0]
        if n >= NL: return
        issued[0] += 1
        t, i = (n % 64) // 4, n % 4
        s = SK if n < 64 else SV
        e(f"s_add_u32 s{sT2}, s{sKV}, {t*32768}")
        e.vmem(f"buffer_load_dwordx4 {q(slot(n))}, v{VKV}, s[{s}:{s+3}], s{sT2} offen offset:{1024*i} nt", f"kv{n}")
    for _ in range(k_early): kv_issue2()
    masks(e, M, LANE, T0, T1)
    TMP = [W0+72+i for i in range(8)] + [QF, QF+1]
    MEAN, SD, RINV, MH = ACC, ACC+1, ACC+2, ACC+3
    e(f"v_cmp_gt_u32 vcc, 32, v{LANE}\ns_nop 1\nv_cndmask_b32 v{MH}, 0, 1.0, vcc")
    e.wait("x")
    ln_stats(e, XA, TMP, MH, MEAN, SD, RINV, T0)
    e(f"v_lshlrev_b32 v{X}, 16, v{XO}\nv_and_b32 v{X+1}, 0xffff0000, v{XO}")
    ln_norm(e, X+2, X, MEAN, SD, RINV, T0, T1)
    ln_norm(e, X+3, X+1, MEAN, SD, RINV, T0, T1)
    e(f"s_lshl_b32 s{sT}, s3, 9")
    e(f"v_lshlrev_b32 v{T0}, 3, v{LANE}\nv_add_u32 v{T0}, s{sT}, v{T0}")
    e(f"ds_write_b64 v{T0}, {d2(X+2)} offset:{L_XT}")
    while issued[0] < 4 + NR and not k_late: kv_issue2()
    e(f"v_lshrrev_b32 v{T0}, 4, v{LANE}\nv_mul_u32_u24 v{T0}, 72, v{T0}\nv_add_u32 v{T0}, s{sT}, v{T0}")
    X2P = [W0+72, W0+74, W0+76, W0+78, QF, QF+2, Y, Y+2, MX]
    e("s_waitcnt lgkmcnt(0)")
    for j in range(9): e(f"ds_read_b64 {d2(X2P[j])}, v{T0} offset:{L_XT+8*j}")
    for r in range(4): e(f"v_mov_b32 v{ACC+r}, 0")
    e("s_waitcnt lgkmcnt(0)")
    for n in range(18):
        src = X2P[n//2] + (n & 1)
        for w in range(4): e(f"v_and_b32 v{X+w}, v{src}, v{M[w]}")
        e.wait(f"wq{n}")
        e("s_nop 0")
        e(f"v_mfma_f32_16x16x32_bf16 {q(ACC)}, {q(X)}, {q(W0+4*n)}, {q(ACC)}")
    e(f"v_and_b32 v{T0}, 15, v{LANE}\nv_lshlrev_b32 v{T0}, 5, v{T0}\nv_and_b32 v{T1}, 16, v{LANE}\nv_add_u32 v{T0}, v{T0}, v{T1}")
    e(f"v_mov_b32 v{VO}, v{T0}")
    e(f"v_add_u32 v{T0}, s{sT}, v{T0}")
    e("s_nop 4")
    e(f"ds_write_b128 v{T0}, {q(ACC)} offset:{L_QP}")
    e("s_waitcnt lgkmcnt(0)\ns_barrier")
    lb = e.label("qskip")
    e(f"s_cmp_ge_u32 s3, 2\ns_cbranch_scc1 {lb}")
    e(f"s_lshl_b32 s{sT2}, s3, 8\nv_lshlrev_b32 v{T0}, 2, v{LANE}\nv_add_u32 v{T0}, s{sT2}, v{T0}")
    for j in range(8): e(f"ds_read_b32 v{X+j}, v{T0} offset:{L_QP+512*j}")
    e("s_waitcnt lgkmcnt(0)")
    for j in range(1, 8): e(f"v_add_f32 v{X}, v{X}, v{X+j}")
    e(f"v_cvt_pk_bf16_f32 v{X}, v{X}, v{X}\nv_lshrrev_b32 v{T0}, 1, v{T0}")
    e(f"ds_write_b16 v{T0}, v{X} offset:{L_QF}")
    e("s_waitcnt lgkmcnt(0)")
    e(f"{lb}:")
    e("s_barrier")
    e(f"v_and_b32 v{T0}, 15, v{LANE}\nv_lshlrev_b32 v{T0}, 4, v{T0}")
    e(f"ds_read_b128 {q(QF)}, v{T0} offset:{L_QF}")
    stamp(2)
    while issued[0] < 4 + NR: kv_issue2()
    e(f"v_lshrrev_b32 v{T1}, 4, v{LANE}\nv_mul_u32_u24 v{T1}, {4*1152}, v{T1}\nv_add_u32 v{FL}, v{T1}, v{T0}")
    e(f"s_lshl_b32 s{sT}, s{sH}, 7\ns_lshl_b32 s{sT2}, s3, 4\ns_add_u32 s{sT}, s{sT}, s{sT2}\ns_mul_i32 s{sT}, s{sT}, 1152")
    e(f"v_add_u32 v{FL}, s{sT}, v{FL}")
    e(f"s_movk_i32 s{sT}, 2304")
    wo_list = [(rg, t) for rg in range(4) for t in range(5)]
    wo_i = [0]
    def wo_issue():
        if wo_i[0] >= 20: return
        rg, t = wo_list[wo_i[0]]; r = W0 + 4*wo_i[0]; wo_i[0] += 1
        so = f"s{sT}" if rg >= 2 else "0"
        e.vmem(f"buffer_load_dwordx4 {q(r)}, v{FL}, s[{SWO}:{SWO+3}], {so} offen offset:{(rg&1)*1152+t*256}{ntw}", f"wo{wo_i[0]-1}")
    e(f"v_mov_b32 v{MX}, 0xff800000")
    e("s_waitcnt lgkmcnt(0)")
    for t in range(16):
        e.wait(f"kv{4*t+3}")
        for j in range(4):
            for i in range(4):
                r = slot(4*t+i) + j
                if j == 0: e(f"v_dot2_f32_bf16 v{X+i}, v{r}, v{QF}, 0")
                else: e(f"v_dot2c_f32_bf16 v{X+i}, v{r}, v{QF+j}")
        e("s_nop 2")
        while issued[0] <= 4*t + 3 + NR: kv_issue2()
        if t >= wo_start:
            for _ in range(wo_per): wo_issue()
        e(f"v_add_f32_dpp v{X}, v{X}, v{X} row_ror:8 row_mask:0xf bank_mask:0x3")
        e(f"v_add_f32_dpp v{X}, v{X+2}, v{X+2} row_ror:8 row_mask:0xf bank_mask:0xc")
        e(f"v_add_f32_dpp v{X+1}, v{X+1}, v{X+1} row_ror:8 row_mask:0xf bank_mask:0x3")
        e(f"v_add_f32_dpp v{X+1}, v{X+3}, v{X+3} row_ror:8 row_mask:0xf bank_mask:0xc")
        e("s_nop 0")
        e(f"v_add_f32_dpp v{X}, v{X}, v{X} row_shl:4 row_mask:0xf bank_mask:0x5")
        e("s_nop 0")
        e(f"v_add_f32_dpp v{X}, v{X+1}, v{X+1} row_shr:4 row_mask:0xf bank_mask:0xa")
        e("s_nop 1")
        e(f"v_add_f32_dpp v{X}, v{X}, v{X} quad_perm:[1,0,3,2] {DPPF}")
        e("s_nop 1")
        e(f"v_add_f32_dpp v{X}, v{X}, v{X} quad_perm:[2,3,0,1] {DPPF}")
        bf16r(e, X, X)
        e(f"v_mul_f32 v{X}, {hx(f32(SCALE))}, v{X}")
        bf16r(e, S0+t, X)
        e(f"v_max_f32 v{MX}, v{MX}, v{S0+t}")
    assert wo_i[0] == 20
    stamp(3)
    allreduce(e, "max", MX, T0, rors=(8, 4))
    e(f"v_mul_f32 v{MX}, {hx(f32(LOG2E))}, v{MX}")
    e(f"s_mov_b32 s{sT}, {hx(f32(LOG2E))}")
    e(f"v_mov_b32 v{LS}, 0")
    for t in range(16): e(f"v_fma_f32 v{S0+t}, v{S0+t}, s{sT}, -v{MX}")
    for t in range(16): e(f"v_exp_f32 v{S0+t}, v{S0+t}")
    e("s_nop 0")
    for t in range(16):
        e(f"v_add_f32 v{LS}, v{LS}, v{S0+t}")
        e(f"v_cvt_pk_bf16_f32 v{S0+t}, v{S0+t}, v{S0+t}")
    allreduce(e, "add", LS, T0, rors=(8, 4))
    e(f"s_lshl_b32 s{sT}, s{sBH}, 8\ns_add_u32 s{sT}, s{sT}, {WS_MLW}\ns_lshl_b32 s{sT2}, s{sS}, 6\ns_add_u32 s{sT2}, s{sT2}, s{sT}")
    e(f"s_lshl_b32 s{sEX}, s3, 3\ns_add_u32 s{sT2}, s{sT2}, s{sEX}")
    e(f"v_mov_b32 v{T0}, s{sT2}")
    e(f"v_min_u32 v{X}, 0xfffffffe, v{MX}\nv_min_u32 v{X+1}, 0xfffffffe, v{LS}")
    e("s_mov_b64 exec, 1")
    e.vmem(f"buffer_store_dwordx2 {d2(X)}, v{T0}, s[{SWS}:{SWS+3}], 0 offen sc1", "mlst")
    e("s_mov_b64 exec, -1")
    e(f"s_lshl_b32 s{sT2}, s{sBH}, 2\nv_mov_b32 v{T1}, s{sT2}")
    e.vmem(f"global_load_dword v{FL}, v{T1}, s[24:25] sc1", "flag")
    e(f"v_and_b32 v{T0}, 31, v{LANE}\nv_lshlrev_b32 v{T0}, 3, v{T0}\nv_add_u32 v{T0}, s{sT}, v{T0}")
    for r in range(4): e(f"v_mov_b32 v{ACC+r}, 0")
    MLR = QF
    def diag(dst, n):
        t, i = (n-64)//4, n % 4
        for w in range(4): e(f"v_and_b32_dpp v{dst+w}, v{S0+t}, v{M[w]} row_newbcast:{4*i} {DPPF}")
    diag(X, 64)
    for n in range(64, 128):
        cur = X if n % 2 == 0 else Y; nxt = Y if n % 2 == 0 else X
        if n + 1 < 128: diag(nxt, n+1)
        else: e("s_nop 1")
        e.wait(f"kv{n}")
        e(f"v_mfma_f32_16x16x32_bf16 {q(ACC)}, {q(cur)}, {q(slot(n))}, {q(ACC)}")
        kv_issue2()
        if n == 64 + 4*8:
            ok = e.label("fok"); lp = e.label("flp")
            if "flag" in e.vm: e.wait("flag")
            e(f"{lp}:")
            e(f"v_cmp_ne_u32 vcc, 0x01010101, v{FL}")
            e(f"s_cbranch_vccz {ok}")
            e(f"s_add_u32 s{sSPIN}, s{sSPIN}, 1\ns_cmp_gt_u32 s{sSPIN}, {SPIN_MAX}\ns_cbranch_scc1 {ok}")
            e("s_sleep 8")
            e(f"global_load_dword v{FL}, v{T1}, s[24:25] sc1\ns_waitcnt vmcnt(0)\ns_branch {lp}")
            e(f"{ok}:")
            e.vmem(f"buffer_load_dwordx2 {d2(MLR)}, v{T0}, s[{SWS}:{SWS+3}], 0 offen sc1", "mlr")
        if n == 64 + 4*13:
            ok = e.label("mok"); lp = e.label("mlp")
            if "mlr" in e.vm: e.wait("mlr")
            e(f"{lp}:")
            e(f"v_max_u32 v{MLR+2}, v{MLR}, v{MLR+1}")
            e(f"v_cmp_eq_u32 vcc, -1, v{MLR+2}")
            e(f"s_cbranch_vccz {ok}")
            e(f"s_add_u32 s{sSPIN}, s{sSPIN}, 1\ns_cmp_gt_u32 s{sSPIN}, {SPIN_MAX}\ns_cbranch_scc1 {ok}")
            e("s_sleep 8")
            e(f"buffer_load_dwordx2 {d2(MLR)}, v{T0}, s[{SWS}:{SWS+3}], 0 offen sc1\ns_waitcnt vmcnt(0)\ns_branch {lp}")
            e(f"{ok}:")
            e(f"v_mov_b32 v{MLR+2}, v{MLR}")
            allreduce(e, "max", MLR+2, MLR+3, x32=False)
            e(f"v_sub_f32 v{MLR}, v{MLR}, v{MLR+2}\nv_exp_f32 v{MLR}, v{MLR}")
            e(f"v_sub_f32 v{MX}, v{MX}, v{MLR+2}\nv_exp_f32 v{MX}, v{MX}")
            e(f"v_mul_f32 v{MLR}, v{MLR}, v{MLR+1}")
            allreduce(e, "add", MLR, MLR+3, x32=False)
            e(f"v_rcp_f32 v{MLR}, v{MLR}\ns_nop 0\nv_mul_f32 v{MX}, v{MX}, v{MLR}")
    stamp(4)
    e(f"s_lshl_b32 s{sT}, s3, 9\nv_add_u32 v{T0}, s{sT}, v{VO}")
    e("s_nop 5")
    for r in range(4): e(f"v_mul_f32 v{ACC+r}, v{ACC+r}, v{MX}")
    e(f"ds_write_b128 v{T0}, {q(ACC)} offset:{L_QP}")
    e(f"v_lshrrev_b32 v{T1}, 4, v{LANE}\nv_lshlrev_b32 v{T1}, 4, v{T1}\ns_lshl_b32 s{sT2}, s3, 6\nv_add_u32 v{T1}, s{sT2}, v{T1}")
    e("s_waitcnt lgkmcnt(0)\ns_barrier")
    for j in range(8): e(f"ds_read_b128 {q(R0+4*j)}, v{T1} offset:{L_QP+512*j}")
    YA = S0
    yacc = [S0, S0+4, S0+8, S0+12, ACC]
    for t in range(5):
        for r in range(4): e(f"v_mov_b32 v{yacc[t]+r}, 0")
    for j in range(1, 8):
        e(f"s_waitcnt lgkmcnt({7-j})")
        for r in range(4): e(f"v_add_f32 v{R0+r}, v{R0+r}, v{R0+4*j+r}")
    for r in range(4): e(f"v_cvt_pk_bf16_f32 v{R0+r}, v{R0+r}, v{R0+r}")
    if any(x and x.startswith("wo") for x in e.vm): e.wait("wo19")
    for rg in range(4):
        cur = X if rg % 2 == 0 else Y
        for w in range(4): e(f"v_and_b32 v{cur+w}, v{R0+rg}, v{M[w]}")
        e("s_nop 1")
        for t in range(5):
            e(f"v_mfma_f32_16x16x32_bf16 {q(yacc[t])}, {q(cur)}, {q(W0+4*(rg*5+t))}, {q(yacc[t])}")
    e(f"s_mul_i32 s{sT}, s3, 2560\nv_add_u32 v{T0}, s{sT}, v{VO}")
    e("s_nop 2")
    for t in range(5):
        if t == 4: e("s_nop 3")
        e(f"ds_write_b128 v{T0}, {q(yacc[t])} offset:{L_YP+512*t}")
    e(f"s_mul_i32 s{sT}, s3, 288\nv_lshlrev_b32 v{T1}, 4, v{LANE}\nv_add_u32 v{T1}, s{sT}, v{T1}")
    e(f"s_mul_i32 s{sT2}, s{sROW}, 2304\ns_add_u32 s{sT2}, s{sT2}, {WS_Y}")
    e("s_waitcnt lgkmcnt(0)\ns_barrier")
    e("s_mov_b64 exec, 0x3ffff")
    for j in range(8): e(f"ds_read_b128 {q(R0+4*j)}, v{T1} offset:{L_YP+2560*j}")
    for j in range(1, 8):
        e(f"s_waitcnt lgkmcnt({7-j})")
        for r in range(4): e(f"v_add_f32 v{R0+r}, v{R0+r}, v{R0+4*j+r}")
    for r in range(4): e(f"v_min_u32 v{R0+r}, 0xfffffffe, v{R0+r}")
    e(f"buffer_store_dwordx4 {q(R0)}, v{T1}, s[{SWS}:{SWS+3}], s{sT2} offen sc1")
    if stamps:
        stamp(1)
        e("s_waitcnt lgkmcnt(0)\ns_cmp_lg_u32 s3, 0\ns_cbranch_scc1 L_end")
        e(f"s_mov_b64 exec, 1\ns_lshl_b32 s{sT}, s2, 6\nv_mov_b32 v{T0}, s{sT}")
        for i in range(5):
            e(f"v_mov_b32 v{X}, s{sST+2*i}\nv_mov_b32 v{X+1}, s{sST+2*i+1}")
            e(f"buffer_store_dwordx2 {d2(X)}, v{T0}, s[{SWS}:{SWS+3}], 0 offen offset:{8*i}\ns_nop 1")
        e(f"s_getreg_b32 s{sT}, hwreg(HW_REG_XCC_ID)\nv_mov_b32 v{X}, s{sT}\nv_mov_b32 v{X+1}, 0")
        e(f"buffer_store_dwordx2 {d2(X)}, v{T0}, s[{SWS}:{SWS+3}], 0 offen offset:56")
    e("s_endpgm")

    e.vm = []
    e("L_aux:")
    sF, sG = 61, 63
    if fsel == "first":
        e(f"s_mov_b32 s{sF}, s2\ns_sub_u32 s{sG}, s2, 72")
    CL = 4
    for r in range(4): e(f"v_mov_b32 v{CL+r}, -1")
    e(f"v_lshlrev_b32 v1, 4, v{LANE}")
    e(f"s_mul_i32 s{sT}, s{sROW}, 2304\ns_add_u32 s{sT}, s{sT}, {WS_Y}")
    e.vmem(f"buffer_store_dwordx4 {q(CL)}, v1, s[{SWS}:{SWS+3}], s{sT} offen sc1", "clr")
    e.vmem(f"buffer_store_dwordx4 {q(CL)}, v1, s[{SWS}:{SWS+3}], s{sT} offen offset:1024 sc1", "clr")
    e("s_mov_b64 exec, 0xffff")
    e.vmem(f"buffer_store_dwordx4 {q(CL)}, v1, s[{SWS}:{SWS+3}], s{sT} offen offset:2048 sc1", "clr")
    e(f"s_lshl_b32 s{sT}, s{sROW}, 6\ns_add_u32 s{sT}, s{sT}, {WS_MLW}")
    e("s_mov_b64 exec, 0xf")
    e.vmem(f"buffer_store_dwordx4 {q(CL)}, v1, s[{SWS}:{SWS+3}], s{sT} offen sc1", "clr")
    e("s_mov_b64 exec, -1")
    e(f"s_cmp_lt_u32 s{sF}, {NFFN}\ns_cbranch_scc1 L_ffn")
    def flag_store():
        e(f"v_mov_b32 v2, s{sROW}\nv_mov_b32 v3, 1\ns_mov_b64 exec, 1")
        e.vmem("global_store_byte v2, v3, s[24:25] sc1", "flg")
        e("s_mov_b64 exec, -1")
    e.wait("clr"); flag_store()
    e(f"s_cmp_lt_u32 s{sG}, 72\ns_cbranch_scc0 L_end")
    e("s_barrier\ns_barrier")
    sFB, sCB = sB, sH
    e(f"s_cmp_ge_u32 s{sG}, 36\ns_cselect_b32 s{sFB}, 1, 0\ns_mul_i32 s{sT}, s{sFB}, 36\ns_sub_u32 s{sCB}, s{sG}, s{sT}")
    ok = e.label("gok"); lp = e.label("glp")
    e(f"v_lshlrev_b32 v1, 2, v{LANE}")
    e(f"{lp}:")
    e("global_load_dword v2, v1, s[24:25] sc1\ns_waitcnt vmcnt(0)")
    e(f"v_cmp_ne_u32 vcc, 0x01010101, v2\ns_cbranch_vccz {ok}")
    e(f"s_add_u32 s{sSPIN}, s{sSPIN}, 1\ns_cmp_gt_u32 s{sSPIN}, {SPIN_MAX}\ns_cbranch_scc1 {ok}")
    e(f"s_sleep 16\ns_branch {lp}")
    e(f"{ok}:")
    GB = 8
    def gather(nrows, stride, base_s, sleep, tagp):
        nk = (nrows + 15)//16
        e(f"v_lshrrev_b32 v1, 2, v{LANE}\ns_mov_b32 s{sT2}, {stride}\nv_mul_lo_u32 v1, v1, s{sT2}\nv_and_b32 v2, 3, v{LANE}\nv_lshl_add_u32 v1, v2, 4, v1")
        for k in range(nk):
            last_partial = (k == nk-1 and nrows % 16)
            for r in range(4): e(f"v_mov_b32 v{GB+4*k+r}, -1")
            if last_partial:
                e(f"s_mov_b64 exec, {hx(0xffffffff << (4*(nrows%16)) & 0xffffffff) if 4*(nrows%16) < 32 else 0}")
                assert 4*(nrows % 16) == 32
                e("s_mov_b32 exec_lo, 0\ns_mov_b32 exec_hi, -1")
                for r in range(4): e(f"v_mov_b32 v{GB+4*k+r}, 0")
                e("s_mov_b64 exec, -1")
        lp = e.label(tagp+"lp"); ok = e.label(tagp+"ok")
        e(f"{lp}:")
        e(f"s_mov_b64 s[{sEX}:{sEX+1}], 0")
        e(f"s_mov_b32 s{sT2}, s{base_s}")
        for k in range(nk):
            sk = e.label(tagp+"sk")
            g = GB + 4*k
            e(f"v_max3_u32 v2, v{g}, v{g+1}, v{g+2}\nv_max_u32 v2, v2, v{g+3}\nv_cmp_eq_u32 vcc, -1, v2")
            e(f"s_or_b64 s[{sEX}:{sEX+1}], s[{sEX}:{sEX+1}], vcc")
            e(f"s_mov_b64 exec, vcc\ns_cbranch_execz {sk}")
            e(f"buffer_load_dwordx4 {q(g)}, v1, s[{SWS}:{SWS+3}], s{sT2} offen sc1")
            e(f"{sk}:")
            e("s_mov_b64 exec, -1")
            if k < nk-1: e(f"s_add_u32 s{sT2}, s{sT2}, {16*stride}")
        e(f"s_cmp_eq_u64 s[{sEX}:{sEX+1}], 0\ns_cbranch_scc1 {ok}")
        e(f"s_add_u32 s{sSPIN}, s{sSPIN}, 1\ns_cmp_gt_u32 s{sSPIN}, {SPIN_MAX}\ns_cbranch_scc1 {ok}")
        e("s_waitcnt vmcnt(0)")
        if sleep: e(f"s_sleep {sleep}")
        e(f"s_branch {lp}")
        e(f"{ok}:")
        e("s_waitcnt vmcnt(0)")
        for k in range(1, nk):
            for r in range(4): e(f"v_add_f32 v{GB+r}, v{GB+r}, v{GB+4*k+r}")
        for rr in (4, 8):
            e("s_nop 1")
            for r in range(4): e(f"v_add_f32_dpp v{GB+r}, v{GB+r}, v{GB+r} row_ror:{rr} {DPPF}")
        e("s_nop 1")
        e(f"v_permlane16_swap_b32 v{GB}, v{GB+1}\nv_permlane16_swap_b32 v{GB+2}, v{GB+3}\ns_nop 1")
        e(f"v_add_f32 v{GB}, v{GB}, v{GB+1}\nv_add_f32 v{GB+2}, v{GB+2}, v{GB+3}\ns_nop 1")
        e(f"v_permlane32_swap_b32 v{GB}, v{GB+2}\ns_nop 1")
        e(f"v_add_f32 v{GB}, v{GB}, v{GB+2}")
    sGB = sKV
    e(f"s_mul_i32 s{sGB}, s{sFB}, 2304\ns_lshl_b32 s{sT}, s{sCB}, 6\ns_add_u32 s{sGB}, s{sGB}, s{sT}\ns_add_u32 s{sGB}, s{sGB}, {WS_FP}")
    gather(NFFN, 4608, sGB, 32, "f")
    bf16r(e, 5, GB)
    astamp(0)
    e(f"v_and_b32 v2, 3, v{LANE}\nv_lshrrev_b32 v3, 4, v{LANE}\nv_lshl_add_u32 v2, v2, 2, v3")
    e(f"s_mul_i32 s{sT}, s{sFB}, 576\ns_lshl_b32 s{sT2}, s{sCB}, 4\ns_add_u32 s{sT}, s{sT}, s{sT2}")
    e(f"v_add_u32 v2, s{sT}, v2\nv_lshlrev_b32 v6, 1, v2")
    e("global_load_ushort v7, v6, s[4:5]")
    e(f"s_mul_i32 s{sGB}, s{sFB}, {128*2304}\ns_lshl_b32 s{sT}, s{sCB}, 6\ns_add_u32 s{sGB}, s{sGB}, s{sT}\ns_add_u32 s{sGB}, s{sGB}, {WS_Y}")
    e("s_waitcnt vmcnt(0)\nv_lshlrev_b32 v7, 16, v7")
    e("s_barrier\ns_barrier")
    astamp(1)
    gather(128, 2304, sGB, 0, "y")
    bf16r(e, GB, GB)
    e(f"v_add_f32 v{GB}, v7, v{GB}")
    bf16r(e, GB, GB)
    e(f"v_add_f32 v{GB}, v{GB}, v5")
    e(f"v_cvt_pk_bf16_f32 v{GB}, v{GB}, v{GB}")
    e("s_mov_b32 exec_lo, 0x000f000f\ns_mov_b32 exec_hi, 0x000f000f")
    e(f"global_store_short v6, v{GB}, s[22:23]")
    if stamps:
        stamp(5)
        e(f"s_waitcnt lgkmcnt(0)\ns_mov_b64 exec, 1\ns_lshl_b32 s{sT}, s2, 6\nv_mov_b32 v1, s{sT}")
        e(f"v_mov_b32 v2, s{sST+10}\nv_mov_b32 v3, s{sST+11}")
        e(f"buffer_store_dwordx2 v[2:3], v1, s[{SWS}:{SWS+3}], 0 offen offset:40\ns_nop 1")
        e(f"s_add_u32 s{sT}, s{sT}, 16384\nv_mov_b32 v1, s{sT}")
        for i in range(2):
            e(f"v_mov_b32 v2, s{sST+2+2*i}\nv_mov_b32 v3, s{sST+3+2*i}")
            e(f"buffer_store_dwordx2 v[2:3], v1, s[{SWS}:{SWS+3}], 0 offen offset:{24+8*i}\ns_nop 1")
    e("s_endpgm")

    e.vm = ["clr"]*4
    e("L_ffn:")
    e(f"s_mul_i32 s{sT}, s{sF}, 4608\ns_add_u32 s{sT}, s{sT}, {WS_FP}")
    for j in range(4): e.vmem(f"buffer_store_dwordx4 {q(CL)}, v1, s[{SWS}:{SWS+3}], s{sT} offen offset:{1024*j} sc1", "clr")
    e("s_add_u32 s{0}, s{0}, 4096\ns_mov_b32 exec_hi, 0".format(sT))
    e.vmem(f"buffer_store_dwordx4 {q(CL)}, v1, s[{SWS}:{SWS+3}], s{sT} offen sc1", "clr")
    e("s_mov_b64 exec, -1")
    FM = [8, 9, 10, 11]; FX = 12; FY = 16; FACC = 20; X2A = 24; X2B = 28; FD = 32
    AD = 52; FT0 = 54; FT1 = 55; VT = 56; VWD = 57; FH = [24, 28, 20, 60]; FR0 = 64
    assert FR0 + 4*NF <= 168
    SXB = [SK, SV]; SWD = SW
    for b in range(2):
        s = SXB[b]
        e(f"s_add_u32 s{s}, s4, {1152*b}\ns_addc_u32 s{s+1}, s5, 0\ns_mov_b32 s{s+2}, 1152\ns_mov_b32 s{s+3}, 0x20000")
    srd(e, SWD, 20, 21, 4608*1152)
    e(f"v_lshlrev_b32 v{FT0}, 2, v{LANE}")
    XB = [[FD+5*b+k for k in range(5)] for b in range(2)]
    for b in range(2):
        for k in range(5): e.vmem(f"buffer_load_dword v{XB[b][k]}, v{FT0}, s[{SXB[b]}:{SXB[b]+3}], 0 offen offset:{256*k}", "x")
    e(f"v_lshrrev_b32 v{FT0}, 4, v{LANE}\ns_mov_b32 s{sT}, {144*9216}\nv_mul_lo_u32 v{FT0}, v{FT0}, s{sT}")
    e(f"v_and_b32 v{FT1}, 7, v{LANE}\nv_lshl_add_u32 v{FT0}, v{FT1}, 4, v{FT0}\ns_lshl_b32 s{sT}, s{sF}, 7\nv_add_u32 v{FT0}, s{sT}, v{FT0}")
    e(f"v_and_b32 v{FT1}, 8, v{LANE}\nv_cmp_eq_u32 vcc, 0, v{FT1}")
    e(f"v_mov_b32 v{AD}, s18\nv_mov_b32 v{AD+1}, s19\nv_mov_b32 v{FX}, s16\nv_mov_b32 v{FX+1}, s17")
    e(f"v_cndmask_b32 v{AD}, v{AD}, v{FX}, vcc\nv_cndmask_b32 v{AD+1}, v{AD+1}, v{FX+1}, vcc")
    e(f"v_add_co_u32 v{AD}, vcc, v{AD}, v{FT0}\ns_nop 1\nv_addc_co_u32 v{AD+1}, vcc, 0, v{AD+1}, vcc")
    sINC = 66 if not stamps else 80
    e(f"s_mov_b32 s{sINC}, 9216\ns_mov_b32 s{sINC+1}, 0")
    def gu_issue(j, tag):
        e.vmem(f"global_load_dwordx4 {q(FR0+4*j)}, {d2(AD)}, off{ntw}", tag)
        e(f"v_lshl_add_u64 {d2(AD)}, {d2(AD)}, 0, s[{sINC}:{sINC+1}]")
    for j in range(NF): gu_issue(j, f"g{j}")
    masks(e, FM, LANE, FT0, FT1)
    e("s_barrier")
    e.wait("clr");
    e(f"v_mov_b32 v2, s{sROW}\nv_mov_b32 v3, 1\ns_mov_b64 exec, 1")
    e.vmem("global_store_byte v2, v3, s[24:25] sc1", "flg")
    e("s_mov_b64 exec, -1")
    e("s_barrier")
    astamp(0)
    e(f"v_cmp_gt_u32 vcc, 32, v{LANE}\ns_nop 1\nv_cndmask_b32 v{VWD}, 0, 1.0, vcc")
    e.wait("x")
    LT = [FX+i for i in range(8)] + [X2A, X2A+1]
    e(f"v_lshlrev_b32 v{VT}, 3, v{LANE}")
    for b in range(2):
        ln_stats(e, XB[b], LT, VWD, FACC, FACC+1, FACC+2, FT0)
        for k in range(5):
            e(f"v_lshlrev_b32 v{FX}, 16, v{XB[b][k]}\nv_and_b32 v{FX+1}, 0xffff0000, v{XB[b][k]}")
            ln_norm(e, FX+2, FX, FACC, FACC+1, FACC+2, FT0, FT1)
            ln_norm(e, FX+3, FX+1, FACC, FACC+1, FACC+2, FT0, FT1)
            e(f"ds_write_b64 v{VT}, {d2(FX+2)} offset:{L_T + 2560*b + 512*k}")
            e("s_nop 0")
    e(f"v_bfe_u32 v{FT0}, v{LANE}, 3, 1\nv_mul_u32_u24 v{FT0}, 2560, v{FT0}\nv_lshrrev_b32 v{FT1}, 4, v{LANE}\nv_mul_u32_u24 v{FT1}, 576, v{FT1}\nv_add_u32 v{VT}, v{FT0}, v{FT1}")
    e(f"v_lshrrev_b32 v{FT1}, 4, v{LANE}\nv_mul_u32_u24 v{FT1}, {16*1152}, v{FT1}\nv_and_b32 v{FT0}, 15, v{LANE}\nv_lshl_add_u32 v{VWD}, v{FT0}, 4, v{FT1}")
    e(f"s_mul_i32 s{sT}, s{sF}, {64*1152}\nv_add_u32 v{VWD}, s{sT}, v{VWD}")
    for r in range(4): e(f"v_mov_b32 v{FACC+r}, 0")
    e("s_waitcnt lgkmcnt(0)")
    astamp(1)
    if stamps: e("s_waitcnt lgkmcnt(0)")
    e(f"ds_read_b128 {q(X2A)}, v{VT} offset:{L_T}")
    wd_list = [(rg, t) for rg in range(16) for t in range(5)]
    wd_i = [0]
    def wd_issue(j):
        if wd_i[0] >= 80: return
        rg, t = wd_list[wd_i[0]]; wd_i[0] += 1
        if t == 0: e(f"s_movk_i32 s{sT}, {rg*1152}")
        e.vmem(f"buffer_load_dwordx4 {q(FR0+4*j)}, v{VWD}, s[{SWD}:{SWD+3}], s{sT} offen offset:{256*t}{ntw}", f"d{wd_i[0]-1}")
    def body(last):
        for j in range(NF):
            gidx = j // 4
            cur = X2A if gidx % 2 == 0 else X2B; oth = X2B if gidx % 2 == 0 else X2A
            if j % 4 == 0:
                e(f"ds_read_b128 {q(oth)}, v{VT} offset:{L_T + 16*(gidx+1)}")
                e("s_waitcnt lgkmcnt(1)")
            D = FX if j % 2 == 0 else FY
            for w in range(4): e(f"v_and_b32 v{D+w}, v{cur + j%4}, v{FM[w]}")
            if last: e.wait(f"g{j}")
            else: e(f"s_waitcnt vmcnt({NF-1})")
            e("s_nop 0")
            e(f"v_mfma_f32_16x16x32_bf16 {q(FACC)}, {q(D)}, {q(FR0+4*j)}, {q(FACC)}")
            if last: wd_issue(j)
            else: gu_issue(j, None)
        e(f"v_add_u32 v{VT}, {4*NF}, v{VT}")
    e.wait("flg")
    e(f"s_mov_b32 s{sT2}, 0")
    e("L_floop:")
    body(False)
    e(f"s_add_u32 s{sT2}, s{sT2}, 1\ns_cmp_lt_u32 s{sT2}, {144//NF - 1}\ns_cbranch_scc1 L_floop")
    e.vm = [f"g{j}" for j in range(NF)]
    body(True)
    astamp(2)
    e("s_waitcnt lgkmcnt(0)")
    e("s_nop 7")
    G = FX; U = FY
    for r in range(4): bf16r(e, G+r, FACC+r)
    e("s_nop 1")
    for r in range(4): e(f"v_mov_b32_dpp v{U+r}, v{G+r} row_ror:8 {DPPF}")
    K1 = f32(0.044715); K2 = f32(-2.0*0.7978845608028654*LOG2E)
    e(f"s_mov_b32 s{sT2}, {hx(K1)}")
    for r in range(4):
        a = X2A + r
        e(f"v_mul_f32 v{a}, v{G+r}, v{G+r}\nv_fma_f32 v{a}, v{a}, s{sT2}, 1.0\nv_mul_f32 v{a}, v{a}, v{G+r}\nv_mul_f32 v{a}, {hx(K2)}, v{a}")
        e(f"v_exp_f32 v{a}, v{a}\ns_nop 0\nv_add_f32 v{a}, 1.0, v{a}\nv_rcp_f32 v{a}, v{a}\ns_nop 0\nv_mul_f32 v{a}, v{a}, v{G+r}")
        bf16r(e, a, a)
        e(f"v_mul_f32 v{a}, v{a}, v{U+r}\nv_cvt_pk_bf16_f32 v{a}, v{a}, v{a}")
    e(f"v_and_b32 v{FT0}, 7, v{LANE}\nv_lshlrev_b32 v{FT0}, 5, v{FT0}\nv_and_b32 v{FT1}, 16, v{LANE}\nv_add_u32 v{FT0}, v{FT0}, v{FT1}")
    e(f"v_lshrrev_b32 v{FT1}, 5, v{LANE}\nv_lshl_add_u32 v{FT0}, v{FT1}, 8, v{FT0}\nv_and_b32 v{FT1}, 8, v{LANE}\nv_lshl_add_u32 v{FT0}, v{FT1}, 6, v{FT0}")
    e(f"ds_write_b128 v{FT0}, {q(X2A)} offset:{L_H}")
    e(f"v_bfe_u32 v{FT0}, v{LANE}, 3, 1\nv_lshlrev_b32 v{FT0}, 8, v{FT0}\nv_lshrrev_b32 v{FT1}, 4, v{LANE}\nv_lshl_add_u32 v{FT0}, v{FT1}, 6, v{FT0}")
    e("s_waitcnt lgkmcnt(0)")
    for j in range(4): e(f"ds_read_b128 {q(FH[j])}, v{FT0} offset:{L_H+16*j}")
    for r in range(20): e(f"v_mov_b32 v{FD+r}, 0")
    e("s_waitcnt lgkmcnt(0)")
    for n in range(80):
        rg, t = wd_list[n]
        D = FX if rg % 2 == 0 else FY
        if t == 0:
            for w in range(4): e(f"v_and_b32 v{D+w}, v{FH[rg//4] + rg%4}, v{FM[w]}")
            e("s_nop 0")
        e.wait(f"d{n}")
        e(f"v_mfma_f32_16x16x32_bf16 {q(FD+4*t)}, {q(D)}, {q(FR0+4*(n%NF))}, {q(FD+4*t)}")
        wd_issue(n % NF)
    e(f"v_and_b32 v{FT0}, 15, v{LANE}\nv_lshlrev_b32 v{FT0}, 5, v{FT0}\nv_and_b32 v{FT1}, 16, v{LANE}\nv_add_u32 v{FT0}, v{FT0}, v{FT1}")
    e(f"v_lshrrev_b32 v{FT1}, 5, v{LANE}\nv_mul_u32_u24 v{FT1}, 2304, v{FT1}\nv_add_u32 v{FT0}, v{FT0}, v{FT1}")
    e(f"s_mul_i32 s{sT}, s{sF}, 4608\ns_add_u32 s{sT}, s{sT}, {WS_FP}")
    e("s_nop 4")
    for r in range(20): e(f"v_min_u32 v{FD+r}, 0xfffffffe, v{FD+r}")
    for t in range(5):
        if t == 4: e("s_mov_b32 exec_lo, 0x00ff00ff\ns_mov_b32 exec_hi, 0x00ff00ff")
        e(f"buffer_store_dwordx4 {q(FD+4*t)}, v{FT0}, s[{SWS}:{SWS+3}], s{sT} offen offset:{512*t} sc1")
    if stamps:
        stamp(6)
        e(f"s_waitcnt lgkmcnt(0)\ns_mov_b64 exec, 1\ns_lshl_b32 s{sT}, s2, 6\nv_mov_b32 v1, s{sT}")
        e(f"v_mov_b32 v2, s{sST+12}\nv_mov_b32 v3, s{sST+13}")
        e(f"buffer_store_dwordx2 v[2:3], v1, s[{SWS}:{SWS+3}], 0 offen offset:48\ns_nop 1")
        astore(3, 1)
    e("s_waitcnt vmcnt(0)")
    e("L_end:")
    e("s_endpgm")
    e.o.append(f'.section .rodata,"a"\n.p2align 6\n.amdhsa_kernel {KN}')
    e.o.append("  .amdhsa_next_free_vgpr 168\n  .amdhsa_next_free_sgpr 90\n  .amdhsa_accum_offset 168")
    e.o.append("  .amdhsa_group_segment_fixed_size 0\n  .amdhsa_kernarg_size 96\n  .amdhsa_user_sgpr_count 2\n  .amdhsa_user_sgpr_kernarg_segment_ptr 1\n  .amdhsa_system_sgpr_workgroup_id_x 1\n  .amdhsa_float_denorm_mode_32 3\n.end_amdhsa_kernel")
    open(name, "w").write("\n".join(e.o) + "\n")

if __name__ == "__main__":
    gen("parallel_sum__mha_block_cached__geglu_ffn__decode.s", NR=8)
    gen("k_a.s", stamps=True, NR=8, nt_w=False)
    gen("k_b.s", stamps=True, NR=8, k_late=True)
    gen("k_c.s", stamps=True, NR=8, k_late=True, nt_w=False)
    gen("k_d.s", stamps=True, NR=11, nt_w=False)
```

```python
import struct, sys
from gen import (KN, f32, hx, HEADER, E, q, d2, DPPF, allreduce, bf16r, ln_norm, masks, srd, LOG2E, SCALE, SPIN_MAX)

WS_Y   = 0x100000
WS_FP  = 0x1C0000
WS_MLW = 0x250000
WS_P0  = 0x260000
WS_EP  = 0x2F0040
WS_SIZE = 0x300000
L_XT = 0; L_QP = 4096; L_QF = 12288; L_YP = 12800; L_H = 33280; L_SY = 34304; L_FD = 34368; L_END = 39488

class Pool:
    def __init__(s, quads): s.free = list(quads)
    def get(s): return s.free.pop(0)
    def put(s, r): s.free.append(r)
    def put_front(s, r): s.free.insert(0, r)

def gen(name, W=3, PRE=26, stamps=False, WD=6, wo_gap=2, catch=2, aux_prio=3, mlr_at=8, coef_at=13, q_sleep=2, pst=False, k_early=0, K0=3, wo_paced=True, f_sleep=64, BURST=8, wratio=2, WEND=8, wend_from=96, nocomp=False, nowo=False, noffn=False, nounit=False, kfill=True, noaux=0, y_sleep=0, dtest=0):
    e = E()
    e.o.append(HEADER.rstrip("\n"))
    e.o.append(f"; @launch grid=(256,1,1) block=(576,1,1) lds={L_END}")
    e.o.append('.amdgcn_target "amdgcn-amd-amdhsa--gfx950"\n.text')
    e.o.append(f".globl {KN}\n.p2align 8\n.type {KN},@function\n{KN}:")
    SK, SV, SW, SX, SWS, SWO = 28, 32, 36, 40, 44, 48
    sH, sB, sS, sBH, sT, sKV, sT2, sSPIN, sROW, sSTR = 52, 53, 54, 55, 56, 57, 58, 59, 60, 61
    sEX = 62; sST = 64; sU = 84; sU2 = 85; sU3 = 86; sTAG = 87; sTAG2 = 88
    def stamp(i):
        if stamps: e(f"s_memrealtime s[{sST+2*i}:{sST+2*i+1}]")
    def stamp_store(idx_list, region, vt):
        e(f"s_waitcnt lgkmcnt(0)\ns_mov_b64 exec, 1\ns_lshl_b32 s{sT}, s2, 6\ns_add_u32 s{sT}, s{sT}, {16384*region}\nv_mov_b32 v{vt}, s{sT}")
        for i, pos in idx_list:
            e(f"v_mov_b32 v{vt+2}, s{sST+2*i}\nv_mov_b32 v{vt+3}, s{sST+2*i+1}")
            e(f"buffer_store_dwordx2 {d2(vt+2)}, v{vt}, s[{SWS}:{SWS+3}], 0 offen offset:{8*pos}\ns_nop 1")
    e("s_cmp_ge_u32 s2, 256\ns_cbranch_scc1 L_end")
    stamp(0)
    e("s_load_dwordx16 s[4:19], s[0:1], 0\ns_load_dwordx8 s[20:27], s[0:1], 64")
    e("v_lshrrev_b32 v1, 6, v0\nv_and_b32 v0, 63, v0")
    e(f"s_and_b32 s{sH}, s2, 31")
    e("v_readfirstlane_b32 s3, v1")
    e(f"s_bfe_u32 s{sB}, s2, 0x10005\ns_lshr_b32 s{sS}, s2, 6")
    e(f"s_lshl_b32 s{sBH}, s{sB}, 5\ns_add_u32 s{sBH}, s{sBH}, s{sH}")
    e(f"s_lshl_b32 s{sROW}, s{sBH}, 2\ns_add_u32 s{sROW}, s{sROW}, s{sS}")
    e(f"s_mov_b32 s{sSPIN}, 0")
    e(f"s_lshr_b32 s{sU}, s2, 1")
    e("s_waitcnt lgkmcnt(0)")
    if pst: stamp(6)
    srd(e, SWS, 26, 27, WS_SIZE)
    e("s_cmp_eq_u32 s3, 8\ns_cbranch_scc1 L_aux")

    LANE = 0; VKV = 1; M = [2, 3, 4, 5]; QF = 6; T0 = 10; T1 = 11
    ACC = 12; X = 16; Y = 20; S0 = 24; MX = 164; LS = 165; VO = 166; FL = 167
    pool = Pool(range(40, 164, 4))
    e(f"s_min_u32 s{sU}, s{sU}, 103")
    e(f"s_cmp_lt_u32 s{sU}, 68\ns_cselect_b64 s[{SW}:{SW+1}], s[16:17], s[18:19]\ns_cselect_b32 s{sT}, 32, 68")
    e(f"s_cmp_lt_u32 s{sU}, 32\ns_cselect_b64 s[{SW}:{SW+1}], s[10:11], s[{SW}:{SW+1}]\ns_cselect_b32 s{sT}, 0, s{sT}")
    e(f"s_cselect_b32 s{sSTR}, 8, 9\ns_lshl_b32 s{sSTR}, s{sSTR}, 10\ns_mul_i32 s{SW+2}, s{sSTR}, 576")
    e(f"s_cmp_lt_u32 s2, {0 if nounit else 208}\ns_cselect_b32 s{SW+2}, s{SW+2}, 0\ns_mov_b32 s{SW+3}, 0x20000")
    e(f"s_sub_u32 s{sT}, s{sU}, s{sT}\ns_lshl_b32 s{sT}, s{sT}, 8")
    e(f"s_and_b32 s{sU2}, s2, 1\ns_mul_i32 s{sU2}, s{sU2}, 288\ns_mul_i32 s{sT2}, s3, 36\ns_add_u32 s{sU2}, s{sU2}, s{sT2}")
    e(f"s_mul_i32 s{sT2}, s{sU2}, s{sSTR}\ns_add_u32 s{sT}, s{sT}, s{sT2}")
    srd(e, SX, 4, 5, 2304)
    xq = [pool.free.pop() for _ in range(8)]
    XA = [xq[0]+i for i in range(4)] + [xq[1]+i for i in range(4)] + [xq[2]]; XO = xq[2]+1
    TMP = [xq[2]+2, xq[2]+3] + [xq[k]+i for k in range(3, 7) for i in range(4)]
    e(f"v_mul_u32_u24 v{T0}, 36, v{LANE}")
    e.vmem(f"buffer_load_dwordx4 {q(xq[0])}, v{T0}, s[{SX}:{SX+3}], 0 offen", "x")
    e.vmem(f"buffer_load_dwordx4 {q(xq[1])}, v{T0}, s[{SX}:{SX+3}], 0 offen offset:16", "x")
    e.vmem(f"buffer_load_dword v{xq[2]}, v{T0}, s[{SX}:{SX+3}], 0 offen offset:32", "x")
    e(f"v_lshrrev_b32 v{T0}, 5, v{LANE}\nv_mul_u32_u24 v{T0}, 1152, v{T0}\nv_and_b32 v{T1}, 31, v{LANE}\nv_lshl_add_u32 v{T0}, v{T1}, 2, v{T0}")
    e(f"s_lshl_b32 s{sT2}, s{sU2}, 1\nv_add_u32 v{T1}, s{sT2}, v{T0}")
    e.vmem(f"buffer_load_dword v{XO}, v{T1}, s[{SX}:{SX+3}], 0 offen", "x")
    e(f"v_lshrrev_b32 v{VO}, 4, v{LANE}\nv_mul_lo_u32 v{VO}, v{VO}, s{sSTR}\nv_and_b32 v{FL}, 15, v{LANE}\nv_lshl_add_u32 v{VO}, v{FL}, 4, v{VO}")
    e(f"s_lshl_b32 s{sSTR}, s{sSTR}, 2")
    WQ = [pool.free.pop() for _ in range(9)]
    sWO = sU3
    e(f"s_mov_b32 s{sWO}, s{sT}")
    srd(e, SK, 6, 7, 0x8000000); srd(e, SV, 8, 9, 0x8000000); srd(e, SWO, 12, 13, 4096*1152)
    e(f"v_lshlrev_b32 v{VKV}, 4, v{LANE}")
    e(f"s_lshl_b32 s{sKV}, s{sBH}, 21\ns_lshl_b32 s{sT}, s{sS}, 19\ns_add_u32 s{sKV}, s{sKV}, s{sT}\ns_lshl_b32 s{sT}, s3, 12\ns_add_u32 s{sKV}, s{sKV}, s{sT}")
    slot = {}
    order = []
    kvn = [0]; won = [0]
    WO = {}
    def pace():
        w = WEND if kvn[0] > wend_from else W
        if len(order) >= w:
            tg = order[-w]
            if tg in e.vm: e.wait(tg)
    wn = [0]; mix = [0]
    def w_issue(paced=True):
        n = wn[0]; wn[0] += 1
        if paced: pace()
        e.vmem(f"buffer_load_dwordx4 {q(WQ[n])}, v{VO}, s[{SW}:{SW+3}], s{sWO} offen nt", f"w{n}")
        if n < 8: e(f"s_add_u32 s{sWO}, s{sWO}, s{sSTR}")
        order.append(f"w{n}")
    def seq_issue(paced=True):
        if wn[0] < 9 and mix[0] < wratio:
            mix[0] += 1; w_issue(paced)
        else:
            mix[0] = 0; kv_issue(paced)
    def kv_issue(paced=True):
        n = kvn[0]
        if n >= 128: return False
        if n >= 4 and not pool.free: return False
        kvn[0] += 1
        slot[n] = S0 + 4*n if n < 4 else pool.get()
        if paced: pace()
        t, i = (n % 64)//4, n % 4
        s = SK if n < 64 else SV
        e(f"s_add_u32 s{sT2}, s{sKV}, {t*32768}")
        e.vmem(f"buffer_load_dwordx4 {q(slot[n])}, v{VKV}, s[{s}:{s+3}], s{sT2} offen offset:{1024*i} nt", f"kv{n}")
        order.append(f"kv{n}")
        return True
    def wo_issue():
        n = won[0]
        if n >= 20 or len(pool.free) < 5: return False
        won[0] += 1
        rg, t = n//5, n % 5
        WO[n] = pool.get()
        if nowo: return True
        if wo_paced: pace()
        e(f"s_movk_i32 s{sT2}, {rg*4608}")
        e.vmem(f"buffer_load_dwordx4 {q(WO[n])}, v{FL}, s[{SWO}:{SWO+3}], s{sT2} offen offset:{t*256} nt", f"wo{n}")
        if wo_paced: order.append(f"wo{n}")
        return True
    for _ in range(BURST): seq_issue(paced=False)
    e("s_barrier")
    masks(e, M, LANE, T0, T1)
    MEAN, SD, RINV = ACC, ACC+1, ACC+2
    if pst: stamp(7)
    e.wait("x")
    if pst: stamp(8)
    for k in range(9):
        e(f"v_lshlrev_b32 v{TMP[2*k]}, 16, v{XA[k]}\nv_and_b32 v{TMP[2*k+1]}, 0xffff0000, v{XA[k]}")
    e(f"v_add_f32 v{MEAN}, v{TMP[0]}, v{TMP[1]}\nv_add_f32 v{SD}, v{TMP[2]}, v{TMP[3]}")
    for k in range(4, 18, 2): e(f"v_add_f32 v{MEAN}, v{MEAN}, v{TMP[k]}\nv_add_f32 v{SD}, v{SD}, v{TMP[k+1]}")
    e(f"v_add_f32 v{MEAN}, v{MEAN}, v{SD}")
    allreduce(e, "add", MEAN, T0, x32=False)
    e(f"v_mul_f32 v{MEAN}, {hx(f32(1.0/576))}, v{MEAN}")
    for k in range(18): e(f"v_sub_f32 v{TMP[k]}, v{TMP[k]}, v{MEAN}")
    e(f"v_mul_f32 v{SD}, v{TMP[0]}, v{TMP[0]}\nv_mul_f32 v{RINV}, v{TMP[1]}, v{TMP[1]}")
    for k in range(2, 18, 2): e(f"v_fmac_f32 v{SD}, v{TMP[k]}, v{TMP[k]}\nv_fmac_f32 v{RINV}, v{TMP[k+1]}, v{TMP[k+1]}")
    e(f"v_add_f32 v{SD}, v{SD}, v{RINV}")
    allreduce(e, "add", SD, T0, x32=False)
    e(f"v_mul_f32 v{SD}, {hx(f32(1.0/576))}, v{SD}")
    bf16r(e, SD, SD)
    e(f"v_add_f32 v{SD}, {hx(f32(1e-5))}, v{SD}")
    bf16r(e, SD, SD)
    e(f"v_sqrt_f32 v{SD}, v{SD}\ns_nop 0")
    bf16r(e, SD, SD)
    e(f"v_rcp_f32 v{RINV}, v{SD}")
    bf16r(e, MEAN, MEAN)
    e(f"v_lshlrev_b32 v{X}, 16, v{XO}\nv_and_b32 v{X+1}, 0xffff0000, v{XO}")
    ln_norm(e, X+2, X, MEAN, SD, RINV, T0, T1)
    ln_norm(e, X+3, X+1, MEAN, SD, RINV, T0, T1)
    e(f"s_lshl_b32 s{sT}, s3, 9")
    e(f"v_lshrrev_b32 v{T0}, 5, v{LANE}\nv_lshlrev_b32 v{T0}, 8, v{T0}\nv_and_b32 v{T1}, 1, v{LANE}\nv_lshl_add_u32 v{T0}, v{T1}, 7, v{T0}")
    e(f"v_bfe_u32 v{T1}, v{LANE}, 1, 4\nv_lshl_add_u32 v{T0}, v{T1}, 2, v{T0}\nv_add_u32 v{T0}, s{sT}, v{T0}")
    e(f"ds_write_b32 v{T0}, v{X+2} offset:{L_XT}\nds_write_b32 v{T0}, v{X+3} offset:{L_XT+64}")
    e(f"v_bfe_u32 v{T0}, v{LANE}, 3, 1\nv_lshlrev_b32 v{T0}, 8, v{T0}\nv_lshrrev_b32 v{T1}, 4, v{LANE}\nv_lshl_add_u32 v{T0}, v{T1}, 6, v{T0}\nv_add_u32 v{T0}, s{sT}, v{T0}")
    if pst: stamp(9)
    e("s_waitcnt lgkmcnt(0)")
    X2 = [xq[3]+i for i in range(4)] + [xq[4]+i for i in range(4)] + [xq[5]]
    e(f"ds_read_b128 {q(xq[3])}, v{T0} offset:{L_XT}\nds_read_b128 {q(xq[4])}, v{T0} offset:{L_XT+16}\nds_read_b32 v{xq[5]}, v{T0} offset:{L_XT+32}")
    for r in range(4): e(f"v_mov_b32 v{ACC+r}, 0")
    e(f"v_and_b32 v{LS}, 15, v{LANE}\nv_lshlrev_b32 v{LS}, 5, v{LS}\nv_and_b32 v{T1}, 16, v{LANE}\nv_add_u32 v{LS}, v{LS}, v{T1}")
    e(f"v_lshrrev_b32 v{T1}, 5, v{LANE}\nv_lshl_add_u32 v{T0}, v{T1}, 9, v{LS}\ns_lshl_b32 s{sT}, s3, 10\nv_add_u32 v{T0}, s{sT}, v{T0}")
    for r in (xq[0], xq[1], xq[2], xq[6], xq[7]): pool.put(r)
    e("s_waitcnt lgkmcnt(0)")
    for n in range(9):
        D = X if n % 2 == 0 else Y
        while wn[0] <= min(8, n + 2): seq_issue()
        for w in range(4): e(f"v_and_b32 v{D+w}, v{X2[n]}, v{M[w]}")
        if f"w{n}" in e.vm: e.wait(f"w{n}")
        else: e("s_nop 0")
        e("s_nop 0")
        e(f"v_mfma_f32_16x16x32_bf16 {q(ACC)}, {q(D)}, {q(WQ[n])}, {q(ACC)}")
        if kfill and wn[0] == 9: kv_issue(paced=False)
        pool.put(WQ[n])
    for r in (xq[3], xq[4], xq[5]): pool.put(r)
    e(f"v_mov_b32 v{VO}, v{LS}\nv_mov_b32 v{T1}, 1\nv_mov_b32 v{X}, 0")
    e("s_nop 5")
    e(f"ds_write_b128 v{T0}, {q(ACC)} offset:{L_QP}")
    e(f"s_waitcnt lgkmcnt(0)\ns_mov_b64 exec, 1\nds_add_u32 v{X}, v{T1} offset:{L_SY}\ns_mov_b64 exec, -1")
    stamp(5)
    e(f"v_lshrrev_b32 v{T1}, 4, v{LANE}\nv_mul_u32_u24 v{T1}, 1152, v{T1}\nv_and_b32 v{T0}, 15, v{LANE}\nv_lshlrev_b32 v{T0}, 4, v{T0}\nv_add_u32 v{FL}, v{T1}, v{T0}")
    e(f"s_lshl_b32 s{sT}, s{sH}, 7\ns_lshl_b32 s{sT2}, s3, 4\ns_add_u32 s{sT}, s{sT}, s{sT2}\ns_mul_i32 s{sT}, s{sT}, 1152\nv_add_u32 v{FL}, s{sT}, v{FL}")
    e(f"v_mov_b32 v{MX}, 0xff800000")
    while kvn[0] < PRE: assert kv_issue()
    lp = e.label("qw"); ok = e.label("qok")
    e(f"{lp}:")
    e(f"ds_read_b32 v{T1}, v{X} offset:{L_SY+4}\ns_waitcnt lgkmcnt(0)\nv_cmp_eq_u32 vcc, 0, v{T1}\ns_cbranch_vccz {ok}")
    e(f"s_add_u32 s{sSPIN}, s{sSPIN}, 1\ns_cmp_gt_u32 s{sSPIN}, {SPIN_MAX*20}\ns_cbranch_scc1 {ok}\ns_sleep 2\ns_branch {lp}")
    e(f"{ok}:")
    e(f"s_mov_b32 s{sSPIN}, 0")
    e(f"ds_read_b128 {q(QF)}, v{T0} offset:{L_QF}")
    e(f"ds_read_b32 v{T1}, v{X} offset:{L_QF+256}")
    stamp(2)
    e("s_waitcnt lgkmcnt(0)")
    e(f"v_readfirstlane_b32 s{sTAG}, v{T1}")
    def ctile(t):
        if f"kv{4*t+3}" in e.vm: e.wait(f"kv{4*t+3}")
        for j in range(4):
            for i in range(4):
                if nocomp: continue
                r = slot[4*t+i] + j
                if j == 0: e(f"v_dot2_f32_bf16 v{X+i}, v{r}, v{QF}, 0")
                else: e(f"v_dot2c_f32_bf16 v{X+i}, v{r}, v{QF+j}")
        if t > 0:
            for i in range(4): pool.put(slot[4*t+i])
        if nocomp: return
        e("s_nop 2")
        e(f"v_add_f32_dpp v{X}, v{X}, v{X} row_ror:8 row_mask:0xf bank_mask:0x3")
        e(f"v_add_f32_dpp v{X}, v{X+2}, v{X+2} row_ror:8 row_mask:0xf bank_mask:0xc")
        e(f"v_add_f32_dpp v{X+1}, v{X+1}, v{X+1} row_ror:8 row_mask:0xf bank_mask:0x3")
        e(f"v_add_f32_dpp v{X+1}, v{X+3}, v{X+3} row_ror:8 row_mask:0xf bank_mask:0xc")
        e("s_nop 0")
        e(f"v_add_f32_dpp v{X}, v{X}, v{X} row_shl:4 row_mask:0xf bank_mask:0x5")
        e("s_nop 0")
        e(f"v_add_f32_dpp v{X}, v{X+1}, v{X+1} row_shr:4 row_mask:0xf bank_mask:0xa")
        e("s_nop 1")
        e(f"v_add_f32_dpp v{X}, v{X}, v{X} quad_perm:[1,0,3,2] {DPPF}")
        e("s_nop 1")
        e(f"v_add_f32_dpp v{X}, v{X}, v{X} quad_perm:[2,3,0,1] {DPPF}")
        bf16r(e, X, X)
        e(f"v_mul_f32 v{X}, {hx(f32(SCALE))}, v{X}")
        bf16r(e, S0+t, X)
        e(f"v_max_f32 v{MX}, v{MX}, v{S0+t}")
    t = 0; since_wo = 0
    while t < 16:
        lag = kvn[0] - 4*t
        if lag >= 4 + W + 4*(catch-1) + 4:
            for _ in range(catch):
                if t < 16: ctile(t); t += 1
            kv_issue()
        elif lag >= 4 + W:
            ctile(t); t += 1
        else:
            kv_issue(); since_wo += 1
            if since_wo >= wo_gap and wo_issue(): since_wo = 0
    stamp(3)
    allreduce(e, "max", MX, T0, rors=(8, 4))
    e(f"v_mul_f32 v{MX}, {hx(f32(LOG2E))}, v{MX}\ns_mov_b32 s{sT}, {hx(f32(LOG2E))}\nv_mov_b32 v{LS}, 0")
    for t in range(8): e(f"v_fma_f32 v{S0+t}, v{S0+t}, s{sT}, -v{MX}")
    for t in range(8): e(f"v_exp_f32 v{S0+t}, v{S0+t}")
    kv_issue()
    for t in range(8, 16): e(f"v_fma_f32 v{S0+t}, v{S0+t}, s{sT}, -v{MX}")
    for t in range(8, 16): e(f"v_exp_f32 v{S0+t}, v{S0+t}")
    kv_issue()
    for t in range(16):
        e(f"v_add_f32 v{LS}, v{LS}, v{S0+t}\nv_cvt_pk_bf16_f32 v{S0+t}, v{S0+t}, v{S0+t}")
    kv_issue()
    allreduce(e, "add", LS, T0, rors=(8, 4))
    e(f"s_lshl_b32 s{sT}, s{sBH}, 9\ns_add_u32 s{sT}, s{sT}, {WS_MLW}\ns_lshl_b32 s{sT2}, s{sS}, 7\ns_add_u32 s{sT2}, s{sT2}, s{sT}")
    e(f"s_lshl_b32 s{sEX}, s3, 4\ns_add_u32 s{sT2}, s{sT2}, s{sEX}\nv_mov_b32 v{T0}, s{sT2}")
    e(f"v_mov_b32 v{Y}, v{MX}\nv_mov_b32 v{Y+1}, v{LS}\nv_mov_b32 v{Y+2}, 0\nv_mov_b32 v{Y+3}, s{sTAG}")
    e("s_mov_b64 exec, 1")
    e.vmem(f"buffer_store_dwordx4 {q(Y)}, v{T0}, s[{SWS}:{SWS+3}], 0 offen sc1", "mlst")
    e("s_mov_b64 exec, -1")
    e(f"v_and_b32 v{T0}, 31, v{LANE}\nv_lshlrev_b32 v{T0}, 4, v{T0}\nv_add_u32 v{T0}, s{sT}, v{T0}")
    for r in range(4): e(f"v_mov_b32 v{ACC+r}, 0")
    MLR = QF
    def diag(dst, n):
        t, i = (n-64)//4, n % 4
        if nocomp: return
        for w in range(4): e(f"v_and_b32_dpp v{dst+w}, v{S0+t}, v{M[w]} row_newbcast:{4*i} {DPPF}")
    diag(X, 64)
    for n in range(64, 128):
        cur = X if n % 2 == 0 else Y; nxt = Y if n % 2 == 0 else X
        while kvn[0] < min(128, n + W + 1):
            kv_issue(); since_wo += 1
            if since_wo >= wo_gap and wo_issue(): since_wo = 0
        if n + 1 < 128: diag(nxt, n+1)
        else: e("s_nop 1")
        if f"kv{n}" in e.vm: e.wait(f"kv{n}")
        if not nocomp: e(f"v_mfma_f32_16x16x32_bf16 {q(ACC)}, {q(cur)}, {q(slot[n])}, {q(ACC)}")
        pool.put(slot[n])
        if n == 64 + 4*mlr_at and not noaux:
            e.vmem(f"buffer_load_dwordx4 {q(MLR)}, v{T0}, s[{SWS}:{SWS+3}], 0 offen sc1", "mlr")
        if n == 64 + 4*coef_at:
            ok = e.label("mok"); lp = e.label("mlp")
            if "mlr" in e.vm: e.wait("mlr")
            if noaux: e(f"s_branch {ok}")
            e(f"{lp}:")
            e(f"v_cmp_ne_u32 vcc, s{sTAG}, v{MLR+3}\ns_cbranch_vccz {ok}")
            e(f"s_add_u32 s{sSPIN}, s{sSPIN}, 1\ns_cmp_gt_u32 s{sSPIN}, {SPIN_MAX}\ns_cbranch_scc1 {ok}")
            e(f"s_sleep 8\nbuffer_load_dwordx4 {q(MLR)}, v{T0}, s[{SWS}:{SWS+3}], 0 offen sc1\ns_waitcnt vmcnt(0)\ns_branch {lp}")
            e(f"{ok}:")
            e(f"v_mov_b32 v{MLR+2}, v{MLR}")
            allreduce(e, "max", MLR+2, MLR+3, x32=False)
            e(f"v_sub_f32 v{MLR}, v{MLR}, v{MLR+2}\nv_exp_f32 v{MLR}, v{MLR}")
            e(f"v_sub_f32 v{MX}, v{MX}, v{MLR+2}\nv_exp_f32 v{MX}, v{MX}")
            e(f"v_mul_f32 v{MLR}, v{MLR}, v{MLR+1}")
            allreduce(e, "add", MLR, MLR+3, x32=False)
            e(f"v_rcp_f32 v{MLR}, v{MLR}\ns_nop 0\nv_mul_f32 v{MX}, v{MX}, v{MLR}")
            e(f"v_bfe_u32 v{T0}, v{LANE}, 1, 3\nv_lshlrev_b32 v{T0}, 6, v{T0}\nv_and_b32 v{T1}, 1, v{LANE}\nv_lshl_add_u32 v{T0}, v{T1}, 3, v{T0}")
            e(f"v_bfe_u32 v{T1}, v{LANE}, 4, 1\nv_lshl_add_u32 v{T0}, v{T1}, 2, v{T0}\ns_lshl_b32 s{sT}, s3, 9\nv_add_u32 v{T0}, s{sT}, v{T0}")
            e(f"v_lshrrev_b32 v{T1}, 4, v{LANE}\nv_lshlrev_b32 v{T1}, 4, v{T1}\ns_lshl_b32 s{sT}, s3, 6\nv_add_u32 v{T1}, s{sT}, v{T1}")
    assert won[0] == 20, won
    stamp(4)
    RB = [pool.get() for _ in range(8)]
    yacc = [S0, S0+4, S0+8, S0+12, pool.get()]
    for t in range(5):
        for r in range(4): e(f"v_mov_b32 v{yacc[t]+r}, 0")
    for r in range(4): e(f"v_mul_f32 v{ACC+r}, v{ACC+r}, v{MX}")
    for r in range(4): e(f"ds_write_b32 v{T0}, v{ACC+r} offset:{L_QP+16*r}")
    e("s_waitcnt lgkmcnt(0)\ns_barrier")
    for j in range(8): e(f"ds_read_b128 {q(RB[j])}, v{T1} offset:{L_QP+512*j}")
    e(f"s_mul_i32 s{sT}, s3, 2560\nv_add_u32 v{T0}, s{sT}, v{VO}")
    for j in range(1, 8):
        e(f"s_waitcnt lgkmcnt({7-j})")
        for r in range(4): e(f"v_add_f32 v{RB[0]+r}, v{RB[0]+r}, v{RB[j]+r}")
    for r in range(4): e(f"v_cvt_pk_bf16_f32 v{RB[0]+r}, v{RB[0]+r}, v{RB[0]+r}")
    if "wo19" in e.vm: e.wait("wo19")
    for rg in range(4):
        cur = X if rg % 2 == 0 else Y
        for w in range(4): e(f"v_and_b32 v{cur+w}, v{RB[0]+rg}, v{M[w]}")
        e("s_nop 1")
        for t in range(5):
            e(f"v_mfma_f32_16x16x32_bf16 {q(yacc[t])}, {q(cur)}, {q(WO[rg*5+t])}, {q(yacc[t])}")
    e(f"s_mul_i32 s{sT}, s3, 96\nv_lshlrev_b32 v{T1}, 2, v{LANE}\nv_add_u32 v{T1}, s{sT}, v{T1}\nv_lshlrev_b32 v{LS}, 2, v{T1}")
    e(f"s_mul_i32 s{sT2}, s{sROW}, 3072\ns_add_u32 s{sT2}, s{sT2}, {WS_Y}")
    for t in range(5):
        if t == 4: e("s_nop 3")
        e(f"ds_write_b128 v{T0}, {q(yacc[t])} offset:{L_YP+512*t}")
    e("s_waitcnt lgkmcnt(0)\ns_barrier")
    e("s_mov_b64 exec, 0xffffff")
    for j in range(8):
        for r in range(3): e(f"ds_read_b32 v{RB[j]+r}, v{T1} offset:{L_YP+2560*j+768*r}")
        if j == 4: e("s_waitcnt lgkmcnt(6)\n" + "\n".join(f"v_add_f32 v{RB[0]+r}, v{RB[0]+r}, v{RB[jj]+r}" for jj in (1, 2) for r in range(3)))
    e(f"v_mov_b32 v{RB[0]+3}, s{sTAG}")
    for j in range(3, 8):
        e(f"s_waitcnt lgkmcnt({3*(7-j)})")
        for r in range(3): e(f"v_add_f32 v{RB[0]+r}, v{RB[0]+r}, v{RB[j]+r}")
    e(f"buffer_store_dwordx4 {q(RB[0])}, v{LS}, s[{SWS}:{SWS+3}], s{sT2} offen sc1")
    if stamps:
        stamp(1)
        e("s_cmp_lg_u32 s3, 0\ns_cbranch_scc1 L_end")
        if pst: stamp_store([(6, 0), (7, 1), (8, 2), (9, 3), (5, 4)], 2, X)
        stamp_store([(0, 0), (1, 1), (2, 2), (3, 3), (4, 4), (5, 6)], 0, X)
        e(f"s_getreg_b32 s{sT}, hwreg(HW_REG_XCC_ID)\nv_mov_b32 v{X+2}, s{sT}\nv_mov_b32 v{X+3}, 0")
        e(f"buffer_store_dwordx2 {d2(X+2)}, v{X}, s[{SWS}:{SWS+3}], 0 offen offset:56")
    e("s_endpgm")

    e.vm = []
    e("L_aux:")
    if aux_prio: e(f"s_setprio {aux_prio}")
    e(f"v_mov_b32 v2, 0\nv_mov_b32 v3, 0\nds_write_b64 v2, v[2:3] offset:{L_SY}\ns_waitcnt lgkmcnt(0)\ns_barrier")
    if noaux == 1:
        e(f"v_mov_b32 v3, 1\nds_write_b32 v2, v3 offset:{L_SY+4}\ns_waitcnt lgkmcnt(0)\ns_endpgm")
    e(f"s_add_u32 s{sEX}, s26, {WS_EP}\ns_addc_u32 s{sEX+1}, s27, 0\ns_load_dword s{sTAG}, s[{sEX}:{sEX+1}], 0")
    sD, sG, sF0, sFP = sU, sU2, sU3, sSTR
    e(f"s_add_u32 s{sFP}, s2, 48\ns_add_u32 s{sF0}, s2, 96\ns_lshl_b32 s{sF0}, s{sF0}, 5")
    e(f"s_cmp_lt_u32 s2, 48\ns_cselect_b32 s{sD}, 1, 0")
    e(f"s_sub_u32 s{sT}, s2, 208\ns_lshl_b32 s{sT2}, s{sT}, 6\ns_cmp_ge_u32 s2, 208")
    e(f"s_cselect_b32 s{sD}, 2, s{sD}\ns_cselect_b32 s{sFP}, s{sT}, s{sFP}\ns_cselect_b32 s{sF0}, s{sT2}, s{sF0}")
    e(f"s_sub_u32 s{sG}, s2, 48")
    GB = 8
    e(f"v_lshlrev_b32 v1, 4, v{LANE}")
    e(f"s_waitcnt lgkmcnt(0)\ns_add_u32 s{sTAG}, s{sTAG}, 1\nv_mov_b32 v3, s{sTAG}\nv_mov_b32 v4, 0")
    e(f"ds_write_b32 v4, v3 offset:{L_QF+256}")
    e(f"s_lshl_b32 s{sT}, s2, 11\ns_add_u32 s{sT}, s{sT}, {WS_P0}\nv_lshlrev_b32 v2, 5, v{LANE}")
    lp = e.label("pw"); ok = e.label("pok")
    e(f"{lp}:")
    e(f"ds_read_b32 v5, v4 offset:{L_SY}\ns_waitcnt lgkmcnt(0)\nv_cmp_ne_u32 vcc, 8, v5\ns_cbranch_vccz {ok}")
    e(f"s_add_u32 s{sSPIN}, s{sSPIN}, 1\ns_cmp_gt_u32 s{sSPIN}, {SPIN_MAX*20}\ns_cbranch_scc1 {ok}\ns_sleep 1\ns_branch {lp}")
    e(f"{ok}:")
    e(f"s_mov_b32 s{sSPIN}, 0")
    for j in range(8): e(f"ds_read_b128 {q(GB+4*j)}, v1 offset:{L_QP+1024*j}")
    for j in range(1, 8):
        e(f"s_waitcnt lgkmcnt({7-j})")
        for r in range(4): e(f"v_add_f32 v{GB+r}, v{GB+r}, v{GB+4*j+r}")
    e(f"v_mov_b32 v{GB+4}, v{GB+2}\nv_mov_b32 v{GB+6}, v{GB+3}\nv_mov_b32 v{GB+2}, v{GB+1}")
    e(f"v_mov_b32 v{GB+1}, v3\nv_mov_b32 v{GB+3}, v3\nv_mov_b32 v{GB+5}, v3\nv_mov_b32 v{GB+7}, v3")
    e(f"buffer_store_dwordx4 {q(GB)}, v2, s[{SWS}:{SWS+3}], s{sT} offen sc1")
    e(f"buffer_store_dwordx4 {q(GB+4)}, v2, s[{SWS}:{SWS+3}], s{sT} offen offset:16 sc1")
    stamp(1)
    e(f"v_lshrrev_b32 v5, 5, v{LANE}\nv_lshlrev_b32 v5, 11, v5\nv_and_b32 v6, 31, v{LANE}\nv_lshl_add_u32 v5, v6, 5, v5")
    e(f"s_lshl_b32 s{sT}, s{sH}, 12\ns_lshl_b32 s{sT2}, s{sB}, 10\ns_add_u32 s{sT}, s{sT}, s{sT2}\ns_add_u32 s{sT}, s{sT}, {WS_P0}")
    def spin(loadtxt, cmptxt, sleep, tag):
        ok = e.label(tag+"ok"); lp = e.label(tag+"lp")
        e(f"{lp}:")
        e(loadtxt + "\ns_waitcnt vmcnt(0)")
        e(cmptxt + f"\ns_cbranch_vccz {ok}")
        e(f"s_add_u32 s{sSPIN}, s{sSPIN}, 1\ns_cmp_gt_u32 s{sSPIN}, {SPIN_MAX}\ns_cbranch_scc1 {ok}")
        if sleep: e(f"s_sleep {sleep}")
        e(f"s_branch {lp}")
        e(f"{ok}:")
    QG = GB + 8
    if noaux == 2:
        e(f"v_mov_b32 v5, 1\nds_write_b32 v4, v5 offset:{L_SY+4}\ns_waitcnt lgkmcnt(0)\ns_endpgm")
    spin(f"buffer_load_dwordx4 {q(QG)}, v5, s[{SWS}:{SWS+3}], s{sT} offen sc1\nbuffer_load_dwordx4 {q(QG+4)}, v5, s[{SWS}:{SWS+3}], s{sT} offen offset:16 sc1",
         f"v_xor_b32 v7, v3, v{QG+1}\nv_xor_b32 v{GB}, v3, v{QG+3}\nv_xor_b32 v{GB+1}, v3, v{QG+5}\nv_xor_b32 v{GB+2}, v3, v{QG+7}\nv_or3_b32 v7, v7, v{GB}, v{GB+1}\nv_or_b32 v7, v7, v{GB+2}\nv_cmp_ne_u32 vcc, 0, v7", q_sleep, "q")
    e(f"v_lshlrev_b32 v6, 3, v6")
    for r in range(4): e(f"v_mov_b32 v{GB+r}, v{QG+2*r}\nv_mov_b32 v{GB+4+r}, v{QG+2*r}")
    e("s_nop 1")
    for r in range(4): e(f"v_permlane32_swap_b32 v{GB+r}, v{GB+4+r}")
    e("s_nop 1")
    for r in range(4): e(f"v_add_f32 v{GB+r}, v{GB+r}, v{GB+4+r}")
    e(f"v_cvt_pk_bf16_f32 v{GB}, v{GB}, v{GB+1}\nv_cvt_pk_bf16_f32 v{GB+1}, v{GB+2}, v{GB+3}")
    e(f"ds_write_b64 v6, {d2(GB)} offset:{L_QF}")
    e(f"v_mov_b32 v5, 1\ns_waitcnt lgkmcnt(0)\nds_write_b32 v4, v5 offset:{L_SY+4}")
    stamp(2)
    e("s_waitcnt lgkmcnt(0)")
    if aux_prio: e("s_setprio 0")
    if noaux == 3: e("s_endpgm")
    e(f"s_cmp_lg_u32 s{sD}, 0\ns_cbranch_scc1 {'L_end' if noffn else 'L_down'}")
    e(f"s_cmp_lt_u32 s{sG}, 96\ns_cbranch_scc1 L_fin")
    if stamps: stamp_store([(1, 0), (2, 1)], 1, 4)
    e("s_endpgm")
    e("L_fin:")
    sFB, sCB = sB, sH
    e(f"s_cmp_ge_u32 s{sG}, 48\ns_cselect_b32 s{sFB}, 1, 0\ns_mul_i32 s{sT}, s{sFB}, 48\ns_sub_u32 s{sCB}, s{sG}, s{sT}")
    def gather(nrows, stride, base_s, sleep, tagp, seq=False, reduce=True):
        nk = nrows//16; assert nrows % 16 == 0
        e(f"v_lshrrev_b32 v1, 2, v{LANE}\ns_mov_b32 s{sT2}, {stride}\nv_mul_lo_u32 v1, v1, s{sT2}\nv_and_b32 v2, 3, v{LANE}\nv_lshl_add_u32 v1, v2, 4, v1")
        e(f"v_not_b32 v2, v3")
        for k in range(nk): e(f"v_mov_b32 v{GB+4*k+3}, v2")
        if seq:
            e(f"s_mov_b32 s{sT2}, s{base_s}")
            for k in range(nk):
                lp = e.label(tagp+"lp"); ok = e.label(tagp+"ok"); g = GB + 4*k
                e(f"{lp}:")
                e(f"buffer_load_dwordx4 {q(g)}, v1, s[{SWS}:{SWS+3}], s{sT2} offen sc1\ns_waitcnt vmcnt(0)\ns_mov_b64 exec, -1")
                e(f"v_cmp_ne_u32 vcc, v3, v{g+3}\ns_cbranch_vccz {ok}")
                e(f"s_add_u32 s{sSPIN}, s{sSPIN}, 1\ns_cmp_gt_u32 s{sSPIN}, {SPIN_MAX}\ns_cbranch_scc1 {ok}")
                e(f"s_mov_b64 exec, vcc\ns_sleep {sleep}\ns_branch {lp}")
                e(f"{ok}:")
                if k < nk-1: e(f"s_add_u32 s{sT2}, s{sT2}, {16*stride}")
        else:
            lp = e.label(tagp+"lp"); ok = e.label(tagp+"ok")
            e(f"{lp}:")
            e(f"s_mov_b64 s[{sEX}:{sEX+1}], 0\ns_mov_b32 s{sT2}, s{base_s}")
            for k in range(nk):
                sk = e.label(tagp+"sk"); g = GB + 4*k
                e(f"v_cmp_ne_u32 vcc, v3, v{g+3}")
                e(f"s_or_b64 s[{sEX}:{sEX+1}], s[{sEX}:{sEX+1}], vcc\ns_mov_b64 exec, vcc\ns_cbranch_execz {sk}")
                e(f"buffer_load_dwordx4 {q(g)}, v1, s[{SWS}:{SWS+3}], s{sT2} offen sc1")
                e(f"{sk}:")
                e("s_mov_b64 exec, -1")
                if k < nk-1: e(f"s_add_u32 s{sT2}, s{sT2}, {16*stride}")
            e(f"s_cmp_eq_u64 s[{sEX}:{sEX+1}], 0\ns_cbranch_scc1 {ok}")
            e(f"s_add_u32 s{sSPIN}, s{sSPIN}, 1\ns_cmp_gt_u32 s{sSPIN}, {SPIN_MAX}\ns_cbranch_scc1 {ok}")
            e("s_waitcnt vmcnt(0)")
            if sleep: e(f"s_sleep {sleep}")
            e(f"s_branch {lp}")
            e(f"{ok}:")
            e("s_waitcnt vmcnt(0)")
        if not reduce: return
        for k in range(1, nk):
            for r in range(3): e(f"v_add_f32 v{GB+r}, v{GB+r}, v{GB+4*k+r}")
        e(f"v_mov_b32 v{GB+3}, 0")
        for rr in (4, 8):
            e("s_nop 1")
            for r in range(3): e(f"v_add_f32_dpp v{GB+r}, v{GB+r}, v{GB+r} row_ror:{rr} {DPPF}")
        e("s_nop 1")
        e(f"v_permlane16_swap_b32 v{GB}, v{GB+1}\nv_permlane16_swap_b32 v{GB+2}, v{GB+3}\ns_nop 1")
        e(f"v_add_f32 v{GB}, v{GB}, v{GB+1}\nv_add_f32 v{GB+2}, v{GB+2}, v{GB+3}\ns_nop 1")
        e(f"v_permlane32_swap_b32 v{GB}, v{GB+2}\ns_nop 1")
        e(f"v_add_f32 v{GB}, v{GB}, v{GB+2}")
    def reduce3(base, nk):
        for k in range(1, nk):
            for r in range(3): e(f"v_add_f32 v{base+r}, v{base+r}, v{base+4*k+r}")
        e(f"v_mov_b32 v{base+3}, 0")
        for rr in (4, 8):
            e("s_nop 1")
            for r in range(3): e(f"v_add_f32_dpp v{base+r}, v{base+r}, v{base+r} row_ror:{rr} {DPPF}")
        e("s_nop 1")
        e(f"v_permlane16_swap_b32 v{base}, v{base+1}\nv_permlane16_swap_b32 v{base+2}, v{base+3}\ns_nop 1")
        e(f"v_add_f32 v{base}, v{base}, v{base+1}\nv_add_f32 v{base+2}, v{base+2}, v{base+3}\ns_nop 1")
        e(f"v_permlane32_swap_b32 v{base}, v{base+2}\ns_nop 1")
        e(f"v_add_f32 v{base}, v{base}, v{base+2}")
    sGB = sKV; sGF = sD
    FB = GB + 32
    e(f"s_mul_i32 s{sGF}, s{sFB}, 3072\ns_lshl_b32 s{sT}, s{sCB}, 6\ns_add_u32 s{sGF}, s{sGF}, s{sT}\ns_add_u32 s{sGF}, s{sGF}, {WS_FP}")
    e(f"v_and_b32 v2, 3, v{LANE}\nv_lshrrev_b32 v4, 4, v{LANE}\nv_min_u32 v4, 2, v4\nv_mul_u32_u24 v4, 192, v4\nv_add_u32 v2, v2, v4")
    e(f"s_mul_i32 s{sT}, s{sFB}, 576\ns_lshl_b32 s{sT2}, s{sCB}, 2\ns_add_u32 s{sT}, s{sT}, s{sT2}")
    e(f"v_add_u32 v2, s{sT}, v2\nv_lshlrev_b32 v6, 1, v2")
    e("global_load_ushort v7, v6, s[4:5]")
    e(f"s_mul_i32 s{sGB}, s{sFB}, {128*3072}\ns_lshl_b32 s{sT}, s{sCB}, 6\ns_add_u32 s{sGB}, s{sGB}, s{sT}\ns_add_u32 s{sGB}, s{sGB}, {WS_Y}")
    e(f"v_lshrrev_b32 v1, 2, v{LANE}\nv_mul_u32_u24 v4, 6144, v1\nv_mul_u32_u24 v1, 3072, v1\nv_and_b32 v2, 3, v{LANE}\nv_lshl_add_u32 v1, v2, 4, v1\nv_lshl_add_u32 v4, v2, 4, v4")
    e(f"v_not_b32 v2, v3")
    nfk = 0 if (noffn or dtest == 1) else 6
    groups = [(FB+4*k, 4, sGF, k*16*6144) for k in range(nfk)] + [(GB+4*k, 1, sGB, k*16*3072) for k in range(8)]
    for g, _, _, _ in groups: e(f"v_mov_b32 v{g+3}, v2")
    e("s_waitcnt vmcnt(0)\nv_lshlrev_b32 v7, 16, v7")
    def poll(groups, sleep, tagp):
        lp = e.label(tagp+"lp"); ok = e.label(tagp+"ok")
        e(f"{lp}:")
        e(f"s_mov_b64 s[{sEX}:{sEX+1}], 0")
        for g, va, sb, off in groups:
            sk = e.label(tagp+"sk")
            e(f"v_cmp_ne_u32 vcc, v3, v{g+3}\ns_add_u32 s{sT2}, s{sb}, {off}")
            e(f"s_or_b64 s[{sEX}:{sEX+1}], s[{sEX}:{sEX+1}], vcc\ns_mov_b64 exec, vcc\ns_cbranch_execz {sk}")
            e(f"buffer_load_dwordx4 {q(g)}, v{va}, s[{SWS}:{SWS+3}], s{sT2} offen sc1")
            e(f"{sk}:")
            e("s_mov_b64 exec, -1")
        e(f"s_cmp_eq_u64 s[{sEX}:{sEX+1}], 0\ns_cbranch_scc1 {ok}")
        e("s_waitcnt vmcnt(0)")
        e(f"s_add_u32 s{sSPIN}, s{sSPIN}, 1\ns_cmp_gt_u32 s{sSPIN}, {SPIN_MAX}\ns_cbranch_scc1 {ok}")
        if sleep: e(f"s_sleep {sleep}")
        e(f"s_branch {lp}")
        e(f"{ok}:")
    def issue(groups):
        for g, va, sb, off in groups:
            e(f"s_add_u32 s{sT2}, s{sb}, {off}\nbuffer_load_dwordx4 {q(g)}, v{va}, s[{SWS}:{SWS+3}], s{sT2} offen sc1")
    e("s_barrier")
    stamp(3)
    issue(groups[:nfk])
    e("s_barrier")
    stamp(4)
    issue(groups[nfk:])
    if nfk:
        e("s_waitcnt vmcnt(8)")
        poll(groups[:nfk], 4, "f")
        reduce3(FB, nfk)
    bf16r(e, 5, FB)
    e("s_waitcnt vmcnt(0)")
    poll(groups[nfk:], y_sleep, "y")
    reduce3(GB, 8)
    bf16r(e, GB, GB)
    e(f"v_add_f32 v{GB}, v7, v{GB}")
    bf16r(e, GB, GB)
    e(f"v_add_f32 v{GB}, v{GB}, v5\nv_cvt_pk_bf16_f32 v{GB}, v{GB}, v{GB}")
    e("s_mov_b32 exec_lo, 0x000f000f\ns_mov_b32 exec_hi, 0x0000000f")
    e(f"global_store_short v6, v{GB}, s[22:23]")
    e("s_mov_b64 exec, -1")
    if stamps:
        stamp(5)
        stamp_store([(5, 5)], 0, 68)
        stamp_store([(1, 0), (2, 1), (3, 3), (4, 4)], 1, 68)
        e("s_mov_b64 exec, -1")
    e(f"s_cmp_lg_u32 s{sG}, 0\ns_cbranch_scc1 L_end")
    e(f"s_mov_b32 s{sGB}, {WS_Y + 128*3072}")
    gather(128, 3072, sGB, 2, "e", reduce=False)
    e(f"v_mov_b32 v2, {WS_EP}\ns_mov_b64 exec, 1")
    e(f"buffer_store_dword v3, v2, s[{SWS}:{SWS+3}], 0 offen sc1")
    e("s_endpgm")
    e.vm = []
    e("L_down:")
    FM = [8, 9, 10, 11]; FX = 12; FY = 16; FH = [20, 24, 28, 32]; FD = 36; FT0 = 56; FT1 = 57; VWD = 58; PA = 59; PV = 60; FR0 = 72
    NFS = (168 - FR0)//4
    SWD = SW; SWD2 = SK; SP2 = SV
    srd(e, SWD, 20, 21, 0 if dtest == 2 else 4608*1152)
    e(f"s_cmp_eq_u32 s{sD}, 2\ns_cselect_b32 s{sT}, {0 if dtest == 2 else 4608*1152}, 0\ns_cselect_b32 s{sT2}, {WS_SIZE}, 0")
    e(f"s_cselect_b32 s{SWD2+2}, 0, {32*1152}\ns_sub_u32 s{SWD2}, s20, s{SWD2+2}\ns_subb_u32 s{SWD2+1}, s21, 0\ns_mov_b32 s{SWD2+2}, s{sT}\ns_mov_b32 s{SWD2+3}, 0x20000")
    e(f"s_mov_b32 s{SP2}, s26\ns_mov_b32 s{SP2+1}, s27\ns_mov_b32 s{SP2+2}, s{sT2}\ns_mov_b32 s{SP2+3}, 0x20000")
    e(f"v_lshrrev_b32 v{FT1}, 4, v{LANE}\nv_add_u32 v{FT1}, s{sF0}, v{FT1}\nv_mul_u32_u24 v{FT1}, 1152, v{FT1}\nv_and_b32 v{FT0}, 15, v{LANE}\nv_lshl_add_u32 v{VWD}, v{FT0}, 4, v{FT1}")
    dn = [0]; dorder = []
    def wd_issue():
        n = dn[0]
        if n >= 80: return
        dn[0] += 1
        rg, t = n//5, n % 5
        if len(dorder) >= WD and dorder[-WD] in e.vm: e.wait(dorder[-WD])
        s = SWD if rg < 8 else SWD2
        e(f"s_mov_b32 s{sT2}, {rg*4608}")
        e.vmem(f"buffer_load_dwordx4 {q(FR0+4*(n%NFS))}, v{VWD}, s[{s}:{s+3}], s{sT2} offen offset:{256*t} nt", f"d{n}")
        dorder.append(f"d{n}")
    e(f"s_lshr_b32 s{sT}, s{sF0}, 7\ns_lshl_b32 s{sT}, s{sT}, 12")
    e(f"v_lshrrev_b32 v{PA}, 5, v{LANE}\nv_lshlrev_b32 v{PA}, 10, v{PA}\nv_and_b32 v{FT1}, 31, v{LANE}\nv_lshl_add_u32 v{PA}, v{FT1}, 3, v{PA}")
    e(f"s_and_b32 s{sT2}, s{sF0}, 127\ns_lshl_b32 s{sT2}, s{sT2}, 3\ns_add_u32 s{sT}, s{sT}, s{sT2}\ns_add_u32 s{sT}, s{sT}, {WS_P0 + 64*2048}")
    e(f"v_add_u32 v{PA}, s{sT}, v{PA}")
    masks(e, FM, LANE, FX, FX+1)
    e(f"s_mov_b32 s{sT}, {72*2048}\ns_cmp_eq_u32 s{sD}, 2\ns_cselect_b32 s{sTAG2}, s{sTAG}, 0")
    PG = FD
    ld = []; ck = []
    for hb in range(2):
        s_ = SWS if hb == 0 else SP2
        for k, (so, of) in enumerate((("0", 0), ("0", 2048), (f"s{sT}", 0), (f"s{sT}", 2048))):
            r = PG + 8*hb + 2*k
            ld.append(f"buffer_load_dwordx2 {d2(r)}, v{PA}, s[{s_}:{s_+3}], {so} offen offset:{of+256*hb} sc1")
            ck.append(f"v_xor_b32 v{FX+(k if hb == 0 else 4+k)}, s{sTAG if hb == 0 else sTAG2}, v{r+1}")
    ck.append(f"v_or3_b32 v{FX}, v{FX}, v{FX+1}, v{FX+2}\nv_or3_b32 v{FX}, v{FX}, v{FX+3}, v{FX+4}\nv_or3_b32 v{FX}, v{FX}, v{FX+5}, v{FX+6}\nv_or_b32 v{FX}, v{FX}, v{FX+7}\nv_cmp_ne_u32 vcc, 0, v{FX}")
    spin("\n".join(ld), "\n".join(ck), 8, "d")
    for hb in range(2):
        for k in range(4): e(f"v_mov_b32 v{PV+4*hb+k}, v{PG+8*hb+2*k}")
    for _ in range(WD): wd_issue()
    e(f"v_lshrrev_b32 v{FT0}, 5, v{LANE}\nv_lshlrev_b32 v{FT0}, 7, v{FT0}\nv_and_b32 v{FT1}, 3, v{LANE}\nv_lshl_add_u32 v{FT0}, v{FT1}, 5, v{FT0}")
    e(f"v_bfe_u32 v{FT1}, v{LANE}, 2, 3\nv_lshl_add_u32 v{FT0}, v{FT1}, 2, v{FT0}")
    for r in range(20): e(f"v_mov_b32 v{FD+r}, 0")
    K1 = f32(0.044715); K2 = f32(-2.0*0.7978845608028654*LOG2E)
    e(f"s_mov_b32 s{sT}, {hx(K1)}")
    for hb in range(2):
        g = PV+4*hb; u = g+2; a = g+1
        e(f"v_add_f32 v{g}, v{g}, v{g+1}\nv_add_f32 v{u}, v{u}, v{u+1}")
        bf16r(e, g, g); bf16r(e, u, u)
        e(f"v_mul_f32 v{a}, v{g}, v{g}\nv_fma_f32 v{a}, v{a}, s{sT}, 1.0\nv_mul_f32 v{a}, v{a}, v{g}\nv_mul_f32 v{a}, {hx(K2)}, v{a}")
        e(f"v_exp_f32 v{a}, v{a}\ns_nop 0\nv_add_f32 v{a}, 1.0, v{a}\nv_rcp_f32 v{a}, v{a}\ns_nop 0\nv_mul_f32 v{a}, v{a}, v{g}")
        bf16r(e, a, a)
        e(f"v_mul_f32 v{a}, v{a}, v{u}\nv_cvt_pk_bf16_f32 v{a}, v{a}, v{a}")
        e(f"ds_write_b32 v{FT0}, v{a} offset:{L_H+256*hb}")
    e(f"v_bfe_u32 v{FT0}, v{LANE}, 3, 1\nv_lshlrev_b32 v{FT0}, 7, v{FT0}\nv_lshrrev_b32 v{FT1}, 4, v{LANE}\nv_lshl_add_u32 v{FT0}, v{FT1}, 5, v{FT0}")
    e("s_waitcnt lgkmcnt(0)")
    for j in range(4): e(f"ds_read_b128 {q(FH[j])}, v{FT0} offset:{L_H+256*(j//2)+16*(j%2)}")
    stamp(3)
    e("s_waitcnt lgkmcnt(0)")
    for n in range(80):
        rg, t = n//5, n % 5
        D = FX if rg % 2 == 0 else FY
        if t == 0:
            for w in range(4): e(f"v_and_b32 v{D+w}, v{FH[rg//4] + rg%4}, v{FM[w]}")
            e("s_nop 0")
        wd_issue()
        if f"d{n}" in e.vm: e.wait(f"d{n}")
        e(f"v_mfma_f32_16x16x32_bf16 {q(FD+4*t)}, {q(D)}, {q(FR0+4*(n%NFS))}, {q(FD+4*t)}")
    e(f"v_and_b32 v{FT0}, 15, v{LANE}\nv_lshlrev_b32 v{FT0}, 5, v{FT0}\nv_and_b32 v{FT1}, 16, v{LANE}\nv_add_u32 v{FT0}, v{FT0}, v{FT1}")
    e(f"v_lshrrev_b32 v{FT1}, 5, v{LANE}\nv_mul_u32_u24 v{FT1}, 2560, v{FT1}\nv_add_u32 v{FT0}, v{FT0}, v{FT1}")
    e(f"s_mul_i32 s{sT}, s{sFP}, 6144\ns_add_u32 s{sT}, s{sT}, {WS_FP}")
    e(f"v_lshlrev_b32 v{FT1}, 2, v{LANE}\nv_lshlrev_b32 v{VWD}, 4, v{LANE}\ns_add_u32 s{sT2}, s{sT}, 3072")
    e("s_nop 1")
    for t in range(5): e(f"ds_write_b128 v{FT0}, {q(FD+4*t)} offset:{L_FD+512*t}")
    e("s_waitcnt lgkmcnt(0)")
    for b in range(2):
        for k in range(3):
            g = FR0 + 4*(3*b+k)
            for r in range(3): e(f"ds_read_b32 v{g+r}, v{FT1} offset:{L_FD+2560*b+256*k+768*r}")
            e(f"v_mov_b32 v{g+3}, s{sTAG}")
        e("s_waitcnt lgkmcnt(0)")
        for k in range(3):
            g = FR0 + 4*(3*b+k)
            if dtest != 1: e(f"buffer_store_dwordx4 {q(g)}, v{VWD}, s[{SWS}:{SWS+3}], s{sT if b == 0 else sT2} offen offset:{1024*k} sc1")
    if stamps:
        stamp(4)
        stamp_store([(1, 0), (2, 1), (3, 5), (4, 6)], 1, 12)
    e("s_waitcnt vmcnt(0)")
    e("L_end:")
    e("s_endpgm")
    e.o.append(f'.section .rodata,"a"\n.p2align 6\n.amdhsa_kernel {KN}')
    e.o.append("  .amdhsa_next_free_vgpr 168\n  .amdhsa_next_free_sgpr 90\n  .amdhsa_accum_offset 168")
    e.o.append("  .amdhsa_group_segment_fixed_size 0\n  .amdhsa_kernarg_size 96\n  .amdhsa_user_sgpr_count 2\n  .amdhsa_user_sgpr_kernarg_segment_ptr 1\n  .amdhsa_system_sgpr_workgroup_id_x 1\n  .amdhsa_float_denorm_mode_32 3\n.end_amdhsa_kernel")
    open(name, "w").write("\n".join(e.o) + "\n")

if __name__ == "__main__":
    gen("parallel_sum__mha_block_cached__geglu_ffn__decode.s", wratio=9, BURST=10, wo_paced=False)
    base = dict(stamps=True, pst=True, wratio=9, BURST=10, wo_paced=False)
    gen("k_a.s", W=3, **base)
    gen("k_b.s", W=3, noffn=True, **base)
    gen("k_c.s", W=4, **base)
    gen("k_d.s", W=3, dtest=2, **base)
    gen("k_e.s", W=3, WD=4, **base)
```

```python
import struct, sys
from gen import (KN, f32, hx, HEADER, E, q, d2, DPPF, allreduce, bf16r, ln_norm, masks, srd, LOG2E, SCALE, SPIN_MAX)

WS_Y   = 0x100000
WS_FP  = 0x1C0000
WS_MLW = 0x250000
WS_P0  = 0x260000
WS_EP  = 0x2F0040
WS_SIZE = 0x300000
L_XT = 0; L_QP = 4096; L_QF = 12288; L_YP = 12800; L_H = 33280; L_SY = 34304; L_FD = 34368; L_END = 39488

class Pool:
    def __init__(s, quads): s.free = list(quads)
    def get(s): return s.free.pop(0)
    def put(s, r): s.free.append(r)
    def put_front(s, r): s.free.insert(0, r)

def gen(name, W=3, PRE=26, stamps=False, WD=6, wo_gap=2, catch=2, aux_prio=3, mlr_at=8, coef_at=13, q_sleep=2, pst=False, k_early=0, K0=3, wo_paced=True, f_sleep=64, BURST=8, wratio=2, WEND=8, wend_from=96, nocomp=False, nowo=False, noffn=False, nounit=False, kfill=True, noaux=0, y_sleep=0, dtest=0, kf=' nt', vf=' nt', wf=' nt', of=' nt', df=' nt'):
    e = E()
    e.o.append(HEADER.rstrip("\n"))
    e.o.append(f"; @launch grid=(256,1,1) block=(576,1,1) lds={L_END}")
    e.o.append('.amdgcn_target "amdgcn-amd-amdhsa--gfx950"\n.text')
    e.o.append(f".globl {KN}\n.p2align 8\n.type {KN},@function\n{KN}:")
    SK, SV, SW, SX, SWS, SWO = 28, 32, 36, 40, 44, 48
    sH, sB, sS, sBH, sT, sKV, sT2, sSPIN, sROW, sSTR = 52, 53, 54, 55, 56, 57, 58, 59, 60, 61
    sEX = 62; sST = 64; sU = 84; sU2 = 85; sU3 = 86; sTAG = 87; sTAG2 = 88
    def stamp(i):
        if stamps: e(f"s_memrealtime s[{sST+2*i}:{sST+2*i+1}]")
    def stamp_store(idx_list, region, vt):
        e(f"s_waitcnt lgkmcnt(0)\ns_mov_b64 exec, 1\ns_lshl_b32 s{sT}, s2, 6\ns_add_u32 s{sT}, s{sT}, {16384*region}\nv_mov_b32 v{vt}, s{sT}")
        for i, pos in idx_list:
            e(f"v_mov_b32 v{vt+2}, s{sST+2*i}\nv_mov_b32 v{vt+3}, s{sST+2*i+1}")
            e(f"buffer_store_dwordx2 {d2(vt+2)}, v{vt}, s[{SWS}:{SWS+3}], 0 offen offset:{8*pos}\ns_nop 1")
    e("s_cmp_ge_u32 s2, 256\ns_cbranch_scc1 L_end")
    stamp(0)
    e("s_load_dwordx16 s[4:19], s[0:1], 0\ns_load_dwordx8 s[20:27], s[0:1], 64")
    e("v_lshrrev_b32 v1, 6, v0\nv_and_b32 v0, 63, v0")
    e(f"s_and_b32 s{sH}, s2, 31")
    e("v_readfirstlane_b32 s3, v1")
    e(f"s_bfe_u32 s{sB}, s2, 0x10005\ns_lshr_b32 s{sS}, s2, 6")
    e(f"s_lshl_b32 s{sBH}, s{sB}, 5\ns_add_u32 s{sBH}, s{sBH}, s{sH}")
    e(f"s_lshl_b32 s{sROW}, s{sBH}, 2\ns_add_u32 s{sROW}, s{sROW}, s{sS}")
    e(f"s_mov_b32 s{sSPIN}, 0")
    e(f"s_lshr_b32 s{sU}, s2, 1")
    e("s_waitcnt lgkmcnt(0)")
    if pst: stamp(6)
    srd(e, SWS, 26, 27, WS_SIZE)
    e("s_cmp_eq_u32 s3, 8\ns_cbranch_scc1 L_aux")

    LANE = 0; VKV = 1; M = [2, 3, 4, 5]; QF = 6; T0 = 10; T1 = 11
    ACC = 12; X = 16; Y = 20; S0 = 24; MX = 164; LS = 165; VO = 166; FL = 167
    pool = Pool(range(40, 164, 4))
    e(f"s_min_u32 s{sU}, s{sU}, 103")
    e(f"s_cmp_lt_u32 s{sU}, 68\ns_cselect_b64 s[{SW}:{SW+1}], s[16:17], s[18:19]\ns_cselect_b32 s{sT}, 32, 68")
    e(f"s_cmp_lt_u32 s{sU}, 32\ns_cselect_b64 s[{SW}:{SW+1}], s[10:11], s[{SW}:{SW+1}]\ns_cselect_b32 s{sT}, 0, s{sT}")
    e(f"s_cselect_b32 s{sSTR}, 8, 9\ns_lshl_b32 s{sSTR}, s{sSTR}, 10\ns_mul_i32 s{SW+2}, s{sSTR}, 576")
    e(f"s_cmp_lt_u32 s2, {0 if nounit else 208}\ns_cselect_b32 s{SW+2}, s{SW+2}, 0\ns_mov_b32 s{SW+3}, 0x20000")
    e(f"s_sub_u32 s{sT}, s{sU}, s{sT}\ns_lshl_b32 s{sT}, s{sT}, 8")
    e(f"s_and_b32 s{sU2}, s2, 1\ns_mul_i32 s{sU2}, s{sU2}, 288\ns_mul_i32 s{sT2}, s3, 36\ns_add_u32 s{sU2}, s{sU2}, s{sT2}")
    e(f"s_mul_i32 s{sT2}, s{sU2}, s{sSTR}\ns_add_u32 s{sT}, s{sT}, s{sT2}")
    srd(e, SX, 4, 5, 2304)
    xq = [pool.free.pop() for _ in range(8)]
    XA = [xq[0]+i for i in range(4)] + [xq[1]+i for i in range(4)] + [xq[2]]; XO = xq[2]+1
    TMP = [xq[2]+2, xq[2]+3] + [xq[k]+i for k in range(3, 7) for i in range(4)]
    e(f"v_mul_u32_u24 v{T0}, 36, v{LANE}")
    e.vmem(f"buffer_load_dwordx4 {q(xq[0])}, v{T0}, s[{SX}:{SX+3}], 0 offen", "x")
    e.vmem(f"buffer_load_dwordx4 {q(xq[1])}, v{T0}, s[{SX}:{SX+3}], 0 offen offset:16", "x")
    e.vmem(f"buffer_load_dword v{xq[2]}, v{T0}, s[{SX}:{SX+3}], 0 offen offset:32", "x")
    e(f"v_lshrrev_b32 v{T0}, 5, v{LANE}\nv_mul_u32_u24 v{T0}, 1152, v{T0}\nv_and_b32 v{T1}, 31, v{LANE}\nv_lshl_add_u32 v{T0}, v{T1}, 2, v{T0}")
    e(f"s_lshl_b32 s{sT2}, s{sU2}, 1\nv_add_u32 v{T1}, s{sT2}, v{T0}")
    e.vmem(f"buffer_load_dword v{XO}, v{T1}, s[{SX}:{SX+3}], 0 offen", "x")
    e(f"v_lshrrev_b32 v{VO}, 4, v{LANE}\nv_mul_lo_u32 v{VO}, v{VO}, s{sSTR}\nv_and_b32 v{FL}, 15, v{LANE}\nv_lshl_add_u32 v{VO}, v{FL}, 4, v{VO}")
    e(f"s_lshl_b32 s{sSTR}, s{sSTR}, 2")
    WQ = [pool.free.pop() for _ in range(9)]
    sWO = sU3
    e(f"s_mov_b32 s{sWO}, s{sT}")
    srd(e, SK, 6, 7, 0x8000000); srd(e, SV, 8, 9, 0x8000000); srd(e, SWO, 12, 13, 4096*1152)
    e(f"v_lshlrev_b32 v{VKV}, 4, v{LANE}")
    e(f"s_lshl_b32 s{sKV}, s{sBH}, 21\ns_lshl_b32 s{sT}, s{sS}, 19\ns_add_u32 s{sKV}, s{sKV}, s{sT}\ns_lshl_b32 s{sT}, s3, 12\ns_add_u32 s{sKV}, s{sKV}, s{sT}")
    slot = {}
    order = []
    kvn = [0]; won = [0]
    WO = {}
    def pace():
        w = WEND if kvn[0] > wend_from else W
        if len(order) >= w:
            tg = order[-w]
            if tg in e.vm: e.wait(tg)
    wn = [0]; mix = [0]
    def w_issue(paced=True):
        n = wn[0]; wn[0] += 1
        if paced: pace()
        e.vmem(f"buffer_load_dwordx4 {q(WQ[n])}, v{VO}, s[{SW}:{SW+3}], s{sWO} offen{wf}", f"w{n}")
        if n < 8: e(f"s_add_u32 s{sWO}, s{sWO}, s{sSTR}")
        order.append(f"w{n}")
    def seq_issue(paced=True):
        if wn[0] < 9 and mix[0] < wratio:
            mix[0] += 1; w_issue(paced)
        else:
            mix[0] = 0; kv_issue(paced)
    def kv_issue(paced=True):
        n = kvn[0]
        if n >= 128: return False
        if n >= 4 and not pool.free: return False
        kvn[0] += 1
        slot[n] = S0 + 4*n if n < 4 else pool.get()
        if paced: pace()
        t, i = (n % 64)//4, n % 4
        s = SK if n < 64 else SV
        e(f"s_add_u32 s{sT2}, s{sKV}, {t*32768}")
        e.vmem(f"buffer_load_dwordx4 {q(slot[n])}, v{VKV}, s[{s}:{s+3}], s{sT2} offen offset:{1024*i}{kf if n < 64 else vf}", f"kv{n}")
        order.append(f"kv{n}")
        return True
    def wo_issue():
        n = won[0]
        if n >= 20 or len(pool.free) < 5: return False
        won[0] += 1
        rg, t = n//5, n % 5
        WO[n] = pool.get()
        if nowo: return True
        if wo_paced: pace()
        e(f"s_movk_i32 s{sT2}, {rg*4608}")
        e.vmem(f"buffer_load_dwordx4 {q(WO[n])}, v{FL}, s[{SWO}:{SWO+3}], s{sT2} offen offset:{t*256}{of}", f"wo{n}")
        if wo_paced: order.append(f"wo{n}")
        return True
    for _ in range(BURST): seq_issue(paced=False)
    e("s_barrier")
    masks(e, M, LANE, T0, T1)
    MEAN, SD, RINV = ACC, ACC+1, ACC+2
    if pst: stamp(7)
    e.wait("x")
    if pst: stamp(8)
    for k in range(9):
        e(f"v_lshlrev_b32 v{TMP[2*k]}, 16, v{XA[k]}\nv_and_b32 v{TMP[2*k+1]}, 0xffff0000, v{XA[k]}")
    e(f"v_add_f32 v{MEAN}, v{TMP[0]}, v{TMP[1]}\nv_add_f32 v{SD}, v{TMP[2]}, v{TMP[3]}")
    for k in range(4, 18, 2): e(f"v_add_f32 v{MEAN}, v{MEAN}, v{TMP[k]}\nv_add_f32 v{SD}, v{SD}, v{TMP[k+1]}")
    e(f"v_add_f32 v{MEAN}, v{MEAN}, v{SD}")
    allreduce(e, "add", MEAN, T0, x32=False)
    e(f"v_mul_f32 v{MEAN}, {hx(f32(1.0/576))}, v{MEAN}")
    for k in range(18): e(f"v_sub_f32 v{TMP[k]}, v{TMP[k]}, v{MEAN}")
    e(f"v_mul_f32 v{SD}, v{TMP[0]}, v{TMP[0]}\nv_mul_f32 v{RINV}, v{TMP[1]}, v{TMP[1]}")
    for k in range(2, 18, 2): e(f"v_fmac_f32 v{SD}, v{TMP[k]}, v{TMP[k]}\nv_fmac_f32 v{RINV}, v{TMP[k+1]}, v{TMP[k+1]}")
    e(f"v_add_f32 v{SD}, v{SD}, v{RINV}")
    allreduce(e, "add", SD, T0, x32=False)
    e(f"v_mul_f32 v{SD}, {hx(f32(1.0/576))}, v{SD}")
    bf16r(e, SD, SD)
    e(f"v_add_f32 v{SD}, {hx(f32(1e-5))}, v{SD}")
    bf16r(e, SD, SD)
    e(f"v_sqrt_f32 v{SD}, v{SD}\ns_nop 0")
    bf16r(e, SD, SD)
    e(f"v_rcp_f32 v{RINV}, v{SD}")
    bf16r(e, MEAN, MEAN)
    e(f"v_lshlrev_b32 v{X}, 16, v{XO}\nv_and_b32 v{X+1}, 0xffff0000, v{XO}")
    ln_norm(e, X+2, X, MEAN, SD, RINV, T0, T1)
    ln_norm(e, X+3, X+1, MEAN, SD, RINV, T0, T1)
    e(f"s_lshl_b32 s{sT}, s3, 9")
    e(f"v_lshrrev_b32 v{T0}, 5, v{LANE}\nv_lshlrev_b32 v{T0}, 8, v{T0}\nv_and_b32 v{T1}, 1, v{LANE}\nv_lshl_add_u32 v{T0}, v{T1}, 7, v{T0}")
    e(f"v_bfe_u32 v{T1}, v{LANE}, 1, 4\nv_lshl_add_u32 v{T0}, v{T1}, 2, v{T0}\nv_add_u32 v{T0}, s{sT}, v{T0}")
    e(f"ds_write_b32 v{T0}, v{X+2} offset:{L_XT}\nds_write_b32 v{T0}, v{X+3} offset:{L_XT+64}")
    e(f"v_bfe_u32 v{T0}, v{LANE}, 3, 1\nv_lshlrev_b32 v{T0}, 8, v{T0}\nv_lshrrev_b32 v{T1}, 4, v{LANE}\nv_lshl_add_u32 v{T0}, v{T1}, 6, v{T0}\nv_add_u32 v{T0}, s{sT}, v{T0}")
    if pst: stamp(9)
    e("s_waitcnt lgkmcnt(0)")
    X2 = [xq[3]+i for i in range(4)] + [xq[4]+i for i in range(4)] + [xq[5]]
    e(f"ds_read_b128 {q(xq[3])}, v{T0} offset:{L_XT}\nds_read_b128 {q(xq[4])}, v{T0} offset:{L_XT+16}\nds_read_b32 v{xq[5]}, v{T0} offset:{L_XT+32}")
    for r in range(4): e(f"v_mov_b32 v{ACC+r}, 0")
    e(f"v_and_b32 v{LS}, 15, v{LANE}\nv_lshlrev_b32 v{LS}, 5, v{LS}\nv_and_b32 v{T1}, 16, v{LANE}\nv_add_u32 v{LS}, v{LS}, v{T1}")
    e(f"v_lshrrev_b32 v{T1}, 5, v{LANE}\nv_lshl_add_u32 v{T0}, v{T1}, 9, v{LS}\ns_lshl_b32 s{sT}, s3, 10\nv_add_u32 v{T0}, s{sT}, v{T0}")
    for r in (xq[0], xq[1], xq[2], xq[6], xq[7]): pool.put(r)
    e("s_waitcnt lgkmcnt(0)")
    for n in range(9):
        D = X if n % 2 == 0 else Y
        while wn[0] <= min(8, n + 2): seq_issue()
        for w in range(4): e(f"v_and_b32 v{D+w}, v{X2[n]}, v{M[w]}")
        if f"w{n}" in e.vm: e.wait(f"w{n}")
        else: e("s_nop 0")
        e("s_nop 0")
        e(f"v_mfma_f32_16x16x32_bf16 {q(ACC)}, {q(D)}, {q(WQ[n])}, {q(ACC)}")
        if kfill and wn[0] == 9: kv_issue(paced=False)
        pool.put(WQ[n])
    for r in (xq[3], xq[4], xq[5]): pool.put(r)
    e(f"v_mov_b32 v{VO}, v{LS}\nv_mov_b32 v{T1}, 1\nv_mov_b32 v{X}, 0")
    e("s_nop 5")
    e(f"ds_write_b128 v{T0}, {q(ACC)} offset:{L_QP}")
    e(f"s_waitcnt lgkmcnt(0)\ns_mov_b64 exec, 1\nds_add_u32 v{X}, v{T1} offset:{L_SY}\ns_mov_b64 exec, -1")
    stamp(5)
    e(f"v_lshrrev_b32 v{T1}, 4, v{LANE}\nv_mul_u32_u24 v{T1}, 1152, v{T1}\nv_and_b32 v{T0}, 15, v{LANE}\nv_lshlrev_b32 v{T0}, 4, v{T0}\nv_add_u32 v{FL}, v{T1}, v{T0}")
    e(f"s_lshl_b32 s{sT}, s{sH}, 7\ns_lshl_b32 s{sT2}, s3, 4\ns_add_u32 s{sT}, s{sT}, s{sT2}\ns_mul_i32 s{sT}, s{sT}, 1152\nv_add_u32 v{FL}, s{sT}, v{FL}")
    e(f"v_mov_b32 v{MX}, 0xff800000")
    while kvn[0] < PRE: assert kv_issue()
    lp = e.label("qw"); ok = e.label("qok")
    e(f"{lp}:")
    e(f"ds_read_b32 v{T1}, v{X} offset:{L_SY+4}\ns_waitcnt lgkmcnt(0)\nv_cmp_eq_u32 vcc, 0, v{T1}\ns_cbranch_vccz {ok}")
    e(f"s_add_u32 s{sSPIN}, s{sSPIN}, 1\ns_cmp_gt_u32 s{sSPIN}, {SPIN_MAX*20}\ns_cbranch_scc1 {ok}\ns_sleep 2\ns_branch {lp}")
    e(f"{ok}:")
    e(f"s_mov_b32 s{sSPIN}, 0")
    e(f"ds_read_b128 {q(QF)}, v{T0} offset:{L_QF}")
    e(f"ds_read_b32 v{T1}, v{X} offset:{L_QF+256}")
    stamp(2)
    e("s_waitcnt lgkmcnt(0)")
    e(f"v_readfirstlane_b32 s{sTAG}, v{T1}")
    def ctile(t):
        if f"kv{4*t+3}" in e.vm: e.wait(f"kv{4*t+3}")
        for j in range(4):
            for i in range(4):
                if nocomp: continue
                r = slot[4*t+i] + j
                if j == 0: e(f"v_dot2_f32_bf16 v{X+i}, v{r}, v{QF}, 0")
                else: e(f"v_dot2c_f32_bf16 v{X+i}, v{r}, v{QF+j}")
        if t > 0:
            for i in range(4): pool.put(slot[4*t+i])
        if nocomp: return
        e("s_nop 2")
        e(f"v_add_f32_dpp v{X}, v{X}, v{X} row_ror:8 row_mask:0xf bank_mask:0x3")
        e(f"v_add_f32_dpp v{X}, v{X+2}, v{X+2} row_ror:8 row_mask:0xf bank_mask:0xc")
        e(f"v_add_f32_dpp v{X+1}, v{X+1}, v{X+1} row_ror:8 row_mask:0xf bank_mask:0x3")
        e(f"v_add_f32_dpp v{X+1}, v{X+3}, v{X+3} row_ror:8 row_mask:0xf bank_mask:0xc")
        e("s_nop 0")
        e(f"v_add_f32_dpp v{X}, v{X}, v{X} row_shl:4 row_mask:0xf bank_mask:0x5")
        e("s_nop 0")
        e(f"v_add_f32_dpp v{X}, v{X+1}, v{X+1} row_shr:4 row_mask:0xf bank_mask:0xa")
        e("s_nop 1")
        e(f"v_add_f32_dpp v{X}, v{X}, v{X} quad_perm:[1,0,3,2] {DPPF}")
        e("s_nop 1")
        e(f"v_add_f32_dpp v{X}, v{X}, v{X} quad_perm:[2,3,0,1] {DPPF}")
        bf16r(e, X, X)
        e(f"v_mul_f32 v{X}, {hx(f32(SCALE))}, v{X}")
        bf16r(e, S0+t, X)
        e(f"v_max_f32 v{MX}, v{MX}, v{S0+t}")
    t = 0; since_wo = 0
    while t < 16:
        lag = kvn[0] - 4*t
        if lag >= 4 + W + 4*(catch-1) + 4:
            for _ in range(catch):
                if t < 16: ctile(t); t += 1
            kv_issue()
        elif lag >= 4 + W:
            ctile(t); t += 1
        else:
            kv_issue(); since_wo += 1
            if since_wo >= wo_gap and wo_issue(): since_wo = 0
    stamp(3)
    allreduce(e, "max", MX, T0, rors=(8, 4))
    e(f"v_mul_f32 v{MX}, {hx(f32(LOG2E))}, v{MX}\ns_mov_b32 s{sT}, {hx(f32(LOG2E))}\nv_mov_b32 v{LS}, 0")
    for t in range(8): e(f"v_fma_f32 v{S0+t}, v{S0+t}, s{sT}, -v{MX}")
    for t in range(8): e(f"v_exp_f32 v{S0+t}, v{S0+t}")
    kv_issue()
    for t in range(8, 16): e(f"v_fma_f32 v{S0+t}, v{S0+t}, s{sT}, -v{MX}")
    for t in range(8, 16): e(f"v_exp_f32 v{S0+t}, v{S0+t}")
    kv_issue()
    for t in range(16):
        e(f"v_add_f32 v{LS}, v{LS}, v{S0+t}\nv_cvt_pk_bf16_f32 v{S0+t}, v{S0+t}, v{S0+t}")
    kv_issue()
    allreduce(e, "add", LS, T0, rors=(8, 4))
    e(f"s_lshl_b32 s{sT}, s{sBH}, 9\ns_add_u32 s{sT}, s{sT}, {WS_MLW}\ns_lshl_b32 s{sT2}, s{sS}, 7\ns_add_u32 s{sT2}, s{sT2}, s{sT}")
    e(f"s_lshl_b32 s{sEX}, s3, 4\ns_add_u32 s{sT2}, s{sT2}, s{sEX}\nv_mov_b32 v{T0}, s{sT2}")
    e(f"v_mov_b32 v{Y}, v{MX}\nv_mov_b32 v{Y+1}, v{LS}\nv_mov_b32 v{Y+2}, 0\nv_mov_b32 v{Y+3}, s{sTAG}")
    e("s_mov_b64 exec, 1")
    e.vmem(f"buffer_store_dwordx4 {q(Y)}, v{T0}, s[{SWS}:{SWS+3}], 0 offen sc1", "mlst")
    e("s_mov_b64 exec, -1")
    e(f"v_and_b32 v{T0}, 31, v{LANE}\nv_lshlrev_b32 v{T0}, 4, v{T0}\nv_add_u32 v{T0}, s{sT}, v{T0}")
    for r in range(4): e(f"v_mov_b32 v{ACC+r}, 0")
    MLR = QF
    def diag(dst, n):
        t, i = (n-64)//4, n % 4
        if nocomp: return
        for w in range(4): e(f"v_and_b32_dpp v{dst+w}, v{S0+t}, v{M[w]} row_newbcast:{4*i} {DPPF}")
    diag(X, 64)
    for n in range(64, 128):
        cur = X if n % 2 == 0 else Y; nxt = Y if n % 2 == 0 else X
        while kvn[0] < min(128, n + W + 1):
            kv_issue(); since_wo += 1
            if since_wo >= wo_gap and wo_issue(): since_wo = 0
        if n + 1 < 128: diag(nxt, n+1)
        else: e("s_nop 1")
        if f"kv{n}" in e.vm: e.wait(f"kv{n}")
        if not nocomp: e(f"v_mfma_f32_16x16x32_bf16 {q(ACC)}, {q(cur)}, {q(slot[n])}, {q(ACC)}")
        pool.put(slot[n])
        if n == 64 + 4*mlr_at and not noaux:
            e.vmem(f"buffer_load_dwordx4 {q(MLR)}, v{T0}, s[{SWS}:{SWS+3}], 0 offen sc1", "mlr")
        if n == 64 + 4*coef_at:
            ok = e.label("mok"); lp = e.label("mlp")
            if "mlr" in e.vm: e.wait("mlr")
            if noaux: e(f"s_branch {ok}")
            e(f"{lp}:")
            e(f"v_cmp_ne_u32 vcc, s{sTAG}, v{MLR+3}\ns_cbranch_vccz {ok}")
            e(f"s_add_u32 s{sSPIN}, s{sSPIN}, 1\ns_cmp_gt_u32 s{sSPIN}, {SPIN_MAX}\ns_cbranch_scc1 {ok}")
            e(f"s_sleep 8\nbuffer_load_dwordx4 {q(MLR)}, v{T0}, s[{SWS}:{SWS+3}], 0 offen sc1\ns_waitcnt vmcnt(0)\ns_branch {lp}")
            e(f"{ok}:")
            e(f"v_mov_b32 v{MLR+2}, v{MLR}")
            allreduce(e, "max", MLR+2, MLR+3, x32=False)
            e(f"v_sub_f32 v{MLR}, v{MLR}, v{MLR+2}\nv_exp_f32 v{MLR}, v{MLR}")
            e(f"v_sub_f32 v{MX}, v{MX}, v{MLR+2}\nv_exp_f32 v{MX}, v{MX}")
            e(f"v_mul_f32 v{MLR}, v{MLR}, v{MLR+1}")
            allreduce(e, "add", MLR, MLR+3, x32=False)
            e(f"v_rcp_f32 v{MLR}, v{MLR}\ns_nop 0\nv_mul_f32 v{MX}, v{MX}, v{MLR}")
            e(f"v_bfe_u32 v{T0}, v{LANE}, 1, 3\nv_lshlrev_b32 v{T0}, 6, v{T0}\nv_and_b32 v{T1}, 1, v{LANE}\nv_lshl_add_u32 v{T0}, v{T1}, 3, v{T0}")
            e(f"v_bfe_u32 v{T1}, v{LANE}, 4, 1\nv_lshl_add_u32 v{T0}, v{T1}, 2, v{T0}\ns_lshl_b32 s{sT}, s3, 9\nv_add_u32 v{T0}, s{sT}, v{T0}")
            e(f"v_lshrrev_b32 v{T1}, 4, v{LANE}\nv_lshlrev_b32 v{T1}, 4, v{T1}\ns_lshl_b32 s{sT}, s3, 6\nv_add_u32 v{T1}, s{sT}, v{T1}")
    assert won[0] == 20, won
    stamp(4)
    RB = [pool.get() for _ in range(8)]
    yacc = [S0, S0+4, S0+8, S0+12, pool.get()]
    for t in range(5):
        for r in range(4): e(f"v_mov_b32 v{yacc[t]+r}, 0")
    for r in range(4): e(f"v_mul_f32 v{ACC+r}, v{ACC+r}, v{MX}")
    for r in range(4): e(f"ds_write_b32 v{T0}, v{ACC+r} offset:{L_QP+16*r}")
    e("s_waitcnt lgkmcnt(0)\ns_barrier")
    for j in range(8): e(f"ds_read_b128 {q(RB[j])}, v{T1} offset:{L_QP+512*j}")
    e(f"s_mul_i32 s{sT}, s3, 2560\nv_add_u32 v{T0}, s{sT}, v{VO}")
    for j in range(1, 8):
        e(f"s_waitcnt lgkmcnt({7-j})")
        for r in range(4): e(f"v_add_f32 v{RB[0]+r}, v{RB[0]+r}, v{RB[j]+r}")
    for r in range(4): e(f"v_cvt_pk_bf16_f32 v{RB[0]+r}, v{RB[0]+r}, v{RB[0]+r}")
    if "wo19" in e.vm: e.wait("wo19")
    for rg in range(4):
        cur = X if rg % 2 == 0 else Y
        for w in range(4): e(f"v_and_b32 v{cur+w}, v{RB[0]+rg}, v{M[w]}")
        e("s_nop 1")
        for t in range(5):
            e(f"v_mfma_f32_16x16x32_bf16 {q(yacc[t])}, {q(cur)}, {q(WO[rg*5+t])}, {q(yacc[t])}")
    e(f"s_mul_i32 s{sT}, s3, 96\nv_lshlrev_b32 v{T1}, 2, v{LANE}\nv_add_u32 v{T1}, s{sT}, v{T1}\nv_lshlrev_b32 v{LS}, 2, v{T1}")
    e(f"s_mul_i32 s{sT2}, s{sROW}, 3072\ns_add_u32 s{sT2}, s{sT2}, {WS_Y}")
    for t in range(5):
        if t == 4: e("s_nop 3")
        e(f"ds_write_b128 v{T0}, {q(yacc[t])} offset:{L_YP+512*t}")
    e("s_waitcnt lgkmcnt(0)\ns_barrier")
    e("s_mov_b64 exec, 0xffffff")
    for j in range(8):
        for r in range(3): e(f"ds_read_b32 v{RB[j]+r}, v{T1} offset:{L_YP+2560*j+768*r}")
        if j == 4: e("s_waitcnt lgkmcnt(6)\n" + "\n".join(f"v_add_f32 v{RB[0]+r}, v{RB[0]+r}, v{RB[jj]+r}" for jj in (1, 2) for r in range(3)))
    e(f"v_mov_b32 v{RB[0]+3}, s{sTAG}")
    for j in range(3, 8):
        e(f"s_waitcnt lgkmcnt({3*(7-j)})")
        for r in range(3): e(f"v_add_f32 v{RB[0]+r}, v{RB[0]+r}, v{RB[j]+r}")
    e(f"buffer_store_dwordx4 {q(RB[0])}, v{LS}, s[{SWS}:{SWS+3}], s{sT2} offen sc1")
    if stamps:
        stamp(1)
        e("s_cmp_lg_u32 s3, 0\ns_cbranch_scc1 L_end")
        if pst: stamp_store([(6, 0), (7, 1), (8, 2), (9, 3), (5, 4)], 2, X)
        stamp_store([(0, 0), (1, 1), (2, 2), (3, 3), (4, 4), (5, 6)], 0, X)
        e(f"s_getreg_b32 s{sT}, hwreg(HW_REG_XCC_ID)\nv_mov_b32 v{X+2}, s{sT}\nv_mov_b32 v{X+3}, 0")
        e(f"buffer_store_dwordx2 {d2(X+2)}, v{X}, s[{SWS}:{SWS+3}], 0 offen offset:56")
    e("s_endpgm")

    e.vm = []
    e("L_aux:")
    if aux_prio: e(f"s_setprio {aux_prio}")
    e(f"v_mov_b32 v2, 0\nv_mov_b32 v3, 0\nds_write_b64 v2, v[2:3] offset:{L_SY}\ns_waitcnt lgkmcnt(0)\ns_barrier")
    if noaux == 1:
        e(f"v_mov_b32 v3, 1\nds_write_b32 v2, v3 offset:{L_SY+4}\ns_waitcnt lgkmcnt(0)\ns_endpgm")
    e(f"s_add_u32 s{sEX}, s26, {WS_EP}\ns_addc_u32 s{sEX+1}, s27, 0\ns_load_dword s{sTAG}, s[{sEX}:{sEX+1}], 0")
    sD, sG, sF0, sFP = sU, sU2, sU3, sSTR
    e(f"s_add_u32 s{sFP}, s2, 48\ns_add_u32 s{sF0}, s2, 96\ns_lshl_b32 s{sF0}, s{sF0}, 5")
    e(f"s_cmp_lt_u32 s2, 48\ns_cselect_b32 s{sD}, 1, 0")
    e(f"s_sub_u32 s{sT}, s2, 208\ns_lshl_b32 s{sT2}, s{sT}, 6\ns_cmp_ge_u32 s2, 208")
    e(f"s_cselect_b32 s{sD}, 2, s{sD}\ns_cselect_b32 s{sFP}, s{sT}, s{sFP}\ns_cselect_b32 s{sF0}, s{sT2}, s{sF0}")
    e(f"s_sub_u32 s{sG}, s2, 48")
    GB = 8
    e(f"v_lshlrev_b32 v1, 4, v{LANE}")
    e(f"s_waitcnt lgkmcnt(0)\ns_add_u32 s{sTAG}, s{sTAG}, 1\nv_mov_b32 v3, s{sTAG}\nv_mov_b32 v4, 0")
    e(f"ds_write_b32 v4, v3 offset:{L_QF+256}")
    e(f"s_lshl_b32 s{sT}, s2, 11\ns_add_u32 s{sT}, s{sT}, {WS_P0}\nv_lshlrev_b32 v2, 5, v{LANE}")
    lp = e.label("pw"); ok = e.label("pok")
    e(f"{lp}:")
    e(f"ds_read_b32 v5, v4 offset:{L_SY}\ns_waitcnt lgkmcnt(0)\nv_cmp_ne_u32 vcc, 8, v5\ns_cbranch_vccz {ok}")
    e(f"s_add_u32 s{sSPIN}, s{sSPIN}, 1\ns_cmp_gt_u32 s{sSPIN}, {SPIN_MAX*20}\ns_cbranch_scc1 {ok}\ns_sleep 1\ns_branch {lp}")
    e(f"{ok}:")
    e(f"s_mov_b32 s{sSPIN}, 0")
    for j in range(8): e(f"ds_read_b128 {q(GB+4*j)}, v1 offset:{L_QP+1024*j}")
    for j in range(1, 8):
        e(f"s_waitcnt lgkmcnt({7-j})")
        for r in range(4): e(f"v_add_f32 v{GB+r}, v{GB+r}, v{GB+4*j+r}")
    e(f"v_mov_b32 v{GB+4}, v{GB+2}\nv_mov_b32 v{GB+6}, v{GB+3}\nv_mov_b32 v{GB+2}, v{GB+1}")
    e(f"v_mov_b32 v{GB+1}, v3\nv_mov_b32 v{GB+3}, v3\nv_mov_b32 v{GB+5}, v3\nv_mov_b32 v{GB+7}, v3")
    e(f"buffer_store_dwordx4 {q(GB)}, v2, s[{SWS}:{SWS+3}], s{sT} offen sc1")
    e(f"buffer_store_dwordx4 {q(GB+4)}, v2, s[{SWS}:{SWS+3}], s{sT} offen offset:16 sc1")
    stamp(1)
    e(f"v_lshrrev_b32 v5, 5, v{LANE}\nv_lshlrev_b32 v5, 11, v5\nv_and_b32 v6, 31, v{LANE}\nv_lshl_add_u32 v5, v6, 5, v5")
    e(f"s_lshl_b32 s{sT}, s{sH}, 12\ns_lshl_b32 s{sT2}, s{sB}, 10\ns_add_u32 s{sT}, s{sT}, s{sT2}\ns_add_u32 s{sT}, s{sT}, {WS_P0}")
    def spin(loadtxt, cmptxt, sleep, tag):
        ok = e.label(tag+"ok"); lp = e.label(tag+"lp")
        e(f"{lp}:")
        e(loadtxt + "\ns_waitcnt vmcnt(0)")
        e(cmptxt + f"\ns_cbranch_vccz {ok}")
        e(f"s_add_u32 s{sSPIN}, s{sSPIN}, 1\ns_cmp_gt_u32 s{sSPIN}, {SPIN_MAX}\ns_cbranch_scc1 {ok}")
        if sleep: e(f"s_sleep {sleep}")
        e(f"s_branch {lp}")
        e(f"{ok}:")
    QG = GB + 8
    if noaux == 2:
        e(f"v_mov_b32 v5, 1\nds_write_b32 v4, v5 offset:{L_SY+4}\ns_waitcnt lgkmcnt(0)\ns_endpgm")
    spin(f"buffer_load_dwordx4 {q(QG)}, v5, s[{SWS}:{SWS+3}], s{sT} offen sc1\nbuffer_load_dwordx4 {q(QG+4)}, v5, s[{SWS}:{SWS+3}], s{sT} offen offset:16 sc1",
         f"v_xor_b32 v7, v3, v{QG+1}\nv_xor_b32 v{GB}, v3, v{QG+3}\nv_xor_b32 v{GB+1}, v3, v{QG+5}\nv_xor_b32 v{GB+2}, v3, v{QG+7}\nv_or3_b32 v7, v7, v{GB}, v{GB+1}\nv_or_b32 v7, v7, v{GB+2}\nv_cmp_ne_u32 vcc, 0, v7", q_sleep, "q")
    e(f"v_lshlrev_b32 v6, 3, v6")
    for r in range(4): e(f"v_mov_b32 v{GB+r}, v{QG+2*r}\nv_mov_b32 v{GB+4+r}, v{QG+2*r}")
    e("s_nop 1")
    for r in range(4): e(f"v_permlane32_swap_b32 v{GB+r}, v{GB+4+r}")
    e("s_nop 1")
    for r in range(4): e(f"v_add_f32 v{GB+r}, v{GB+r}, v{GB+4+r}")
    e(f"v_cvt_pk_bf16_f32 v{GB}, v{GB}, v{GB+1}\nv_cvt_pk_bf16_f32 v{GB+1}, v{GB+2}, v{GB+3}")
    e(f"ds_write_b64 v6, {d2(GB)} offset:{L_QF}")
    e(f"v_mov_b32 v5, 1\ns_waitcnt lgkmcnt(0)\nds_write_b32 v4, v5 offset:{L_SY+4}")
    stamp(2)
    e("s_waitcnt lgkmcnt(0)")
    if aux_prio: e("s_setprio 0")
    if noaux == 3: e("s_endpgm")
    e(f"s_cmp_lg_u32 s{sD}, 0\ns_cbranch_scc1 {'L_end' if noffn else 'L_down'}")
    e(f"s_cmp_lt_u32 s{sG}, 96\ns_cbranch_scc1 L_fin")
    if stamps: stamp_store([(1, 0), (2, 1)], 1, 4)
    e("s_endpgm")
    e("L_fin:")
    sFB, sCB = sB, sH
    e(f"s_cmp_ge_u32 s{sG}, 48\ns_cselect_b32 s{sFB}, 1, 0\ns_mul_i32 s{sT}, s{sFB}, 48\ns_sub_u32 s{sCB}, s{sG}, s{sT}")
    def gather(nrows, stride, base_s, sleep, tagp, seq=False, reduce=True):
        nk = nrows//16; assert nrows % 16 == 0
        e(f"v_lshrrev_b32 v1, 2, v{LANE}\ns_mov_b32 s{sT2}, {stride}\nv_mul_lo_u32 v1, v1, s{sT2}\nv_and_b32 v2, 3, v{LANE}\nv_lshl_add_u32 v1, v2, 4, v1")
        e(f"v_not_b32 v2, v3")
        for k in range(nk): e(f"v_mov_b32 v{GB+4*k+3}, v2")
        if seq:
            e(f"s_mov_b32 s{sT2}, s{base_s}")
            for k in range(nk):
                lp = e.label(tagp+"lp"); ok = e.label(tagp+"ok"); g = GB + 4*k
                e(f"{lp}:")
                e(f"buffer_load_dwordx4 {q(g)}, v1, s[{SWS}:{SWS+3}], s{sT2} offen sc1\ns_waitcnt vmcnt(0)\ns_mov_b64 exec, -1")
                e(f"v_cmp_ne_u32 vcc, v3, v{g+3}\ns_cbranch_vccz {ok}")
                e(f"s_add_u32 s{sSPIN}, s{sSPIN}, 1\ns_cmp_gt_u32 s{sSPIN}, {SPIN_MAX}\ns_cbranch_scc1 {ok}")
                e(f"s_mov_b64 exec, vcc\ns_sleep {sleep}\ns_branch {lp}")
                e(f"{ok}:")
                if k < nk-1: e(f"s_add_u32 s{sT2}, s{sT2}, {16*stride}")
        else:
            lp = e.label(tagp+"lp"); ok = e.label(tagp+"ok")
            e(f"{lp}:")
            e(f"s_mov_b64 s[{sEX}:{sEX+1}], 0\ns_mov_b32 s{sT2}, s{base_s}")
            for k in range(nk):
                sk = e.label(tagp+"sk"); g = GB + 4*k
                e(f"v_cmp_ne_u32 vcc, v3, v{g+3}")
                e(f"s_or_b64 s[{sEX}:{sEX+1}], s[{sEX}:{sEX+1}], vcc\ns_mov_b64 exec, vcc\ns_cbranch_execz {sk}")
                e(f"buffer_load_dwordx4 {q(g)}, v1, s[{SWS}:{SWS+3}], s{sT2} offen sc1")
                e(f"{sk}:")
                e("s_mov_b64 exec, -1")
                if k < nk-1: e(f"s_add_u32 s{sT2}, s{sT2}, {16*stride}")
            e(f"s_cmp_eq_u64 s[{sEX}:{sEX+1}], 0\ns_cbranch_scc1 {ok}")
            e(f"s_add_u32 s{sSPIN}, s{sSPIN}, 1\ns_cmp_gt_u32 s{sSPIN}, {SPIN_MAX}\ns_cbranch_scc1 {ok}")
            e("s_waitcnt vmcnt(0)")
            if sleep: e(f"s_sleep {sleep}")
            e(f"s_branch {lp}")
            e(f"{ok}:")
            e("s_waitcnt vmcnt(0)")
        if not reduce: return
        for k in range(1, nk):
            for r in range(3): e(f"v_add_f32 v{GB+r}, v{GB+r}, v{GB+4*k+r}")
        e(f"v_mov_b32 v{GB+3}, 0")
        for rr in (4, 8):
            e("s_nop 1")
            for r in range(3): e(f"v_add_f32_dpp v{GB+r}, v{GB+r}, v{GB+r} row_ror:{rr} {DPPF}")
        e("s_nop 1")
        e(f"v_permlane16_swap_b32 v{GB}, v{GB+1}\nv_permlane16_swap_b32 v{GB+2}, v{GB+3}\ns_nop 1")
        e(f"v_add_f32 v{GB}, v{GB}, v{GB+1}\nv_add_f32 v{GB+2}, v{GB+2}, v{GB+3}\ns_nop 1")
        e(f"v_permlane32_swap_b32 v{GB}, v{GB+2}\ns_nop 1")
        e(f"v_add_f32 v{GB}, v{GB}, v{GB+2}")
    def reduce3(base, nk):
        for k in range(1, nk):
            for r in range(3): e(f"v_add_f32 v{base+r}, v{base+r}, v{base+4*k+r}")
        e(f"v_mov_b32 v{base+3}, 0")
        for rr in (4, 8):
            e("s_nop 1")
            for r in range(3): e(f"v_add_f32_dpp v{base+r}, v{base+r}, v{base+r} row_ror:{rr} {DPPF}")
        e("s_nop 1")
        e(f"v_permlane16_swap_b32 v{base}, v{base+1}\nv_permlane16_swap_b32 v{base+2}, v{base+3}\ns_nop 1")
        e(f"v_add_f32 v{base}, v{base}, v{base+1}\nv_add_f32 v{base+2}, v{base+2}, v{base+3}\ns_nop 1")
        e(f"v_permlane32_swap_b32 v{base}, v{base+2}\ns_nop 1")
        e(f"v_add_f32 v{base}, v{base}, v{base+2}")
    sGB = sKV; sGF = sD
    FB = GB + 32
    e(f"s_mul_i32 s{sGF}, s{sFB}, 3072\ns_lshl_b32 s{sT}, s{sCB}, 6\ns_add_u32 s{sGF}, s{sGF}, s{sT}\ns_add_u32 s{sGF}, s{sGF}, {WS_FP}")
    e(f"v_and_b32 v2, 3, v{LANE}\nv_lshrrev_b32 v4, 4, v{LANE}\nv_min_u32 v4, 2, v4\nv_mul_u32_u24 v4, 192, v4\nv_add_u32 v2, v2, v4")
    e(f"s_mul_i32 s{sT}, s{sFB}, 576\ns_lshl_b32 s{sT2}, s{sCB}, 2\ns_add_u32 s{sT}, s{sT}, s{sT2}")
    e(f"v_add_u32 v2, s{sT}, v2\nv_lshlrev_b32 v6, 1, v2")
    e("global_load_ushort v7, v6, s[4:5]")
    e(f"s_mul_i32 s{sGB}, s{sFB}, {128*3072}\ns_lshl_b32 s{sT}, s{sCB}, 6\ns_add_u32 s{sGB}, s{sGB}, s{sT}\ns_add_u32 s{sGB}, s{sGB}, {WS_Y}")
    e(f"v_lshrrev_b32 v1, 2, v{LANE}\nv_mul_u32_u24 v4, 6144, v1\nv_mul_u32_u24 v1, 3072, v1\nv_and_b32 v2, 3, v{LANE}\nv_lshl_add_u32 v1, v2, 4, v1\nv_lshl_add_u32 v4, v2, 4, v4")
    e(f"v_not_b32 v2, v3")
    nfk = 0 if (noffn or dtest == 1) else 6
    groups = [(FB+4*k, 4, sGF, k*16*6144) for k in range(nfk)] + [(GB+4*k, 1, sGB, k*16*3072) for k in range(8)]
    for g, _, _, _ in groups: e(f"v_mov_b32 v{g+3}, v2")
    e("s_waitcnt vmcnt(0)\nv_lshlrev_b32 v7, 16, v7")
    def poll(groups, sleep, tagp):
        lp = e.label(tagp+"lp"); ok = e.label(tagp+"ok")
        e(f"{lp}:")
        e(f"s_mov_b64 s[{sEX}:{sEX+1}], 0")
        for g, va, sb, off in groups:
            sk = e.label(tagp+"sk")
            e(f"v_cmp_ne_u32 vcc, v3, v{g+3}\ns_add_u32 s{sT2}, s{sb}, {off}")
            e(f"s_or_b64 s[{sEX}:{sEX+1}], s[{sEX}:{sEX+1}], vcc\ns_mov_b64 exec, vcc\ns_cbranch_execz {sk}")
            e(f"buffer_load_dwordx4 {q(g)}, v{va}, s[{SWS}:{SWS+3}], s{sT2} offen sc1")
            e(f"{sk}:")
            e("s_mov_b64 exec, -1")
        e(f"s_cmp_eq_u64 s[{sEX}:{sEX+1}], 0\ns_cbranch_scc1 {ok}")
        e("s_waitcnt vmcnt(0)")
        e(f"s_add_u32 s{sSPIN}, s{sSPIN}, 1\ns_cmp_gt_u32 s{sSPIN}, {SPIN_MAX}\ns_cbranch_scc1 {ok}")
        if sleep: e(f"s_sleep {sleep}")
        e(f"s_branch {lp}")
        e(f"{ok}:")
    def issue(groups):
        for g, va, sb, off in groups:
            e(f"s_add_u32 s{sT2}, s{sb}, {off}\nbuffer_load_dwordx4 {q(g)}, v{va}, s[{SWS}:{SWS+3}], s{sT2} offen sc1")
    e("s_barrier")
    stamp(3)
    issue(groups[:nfk])
    e("s_barrier")
    stamp(4)
    issue(groups[nfk:])
    if nfk:
        e("s_waitcnt vmcnt(8)")
        poll(groups[:nfk], 4, "f")
        reduce3(FB, nfk)
    bf16r(e, 5, FB)
    e("s_waitcnt vmcnt(0)")
    poll(groups[nfk:], y_sleep, "y")
    reduce3(GB, 8)
    bf16r(e, GB, GB)
    e(f"v_add_f32 v{GB}, v7, v{GB}")
    bf16r(e, GB, GB)
    e(f"v_add_f32 v{GB}, v{GB}, v5\nv_cvt_pk_bf16_f32 v{GB}, v{GB}, v{GB}")
    e("s_mov_b32 exec_lo, 0x000f000f\ns_mov_b32 exec_hi, 0x0000000f")
    e(f"global_store_short v6, v{GB}, s[22:23]")
    e("s_mov_b64 exec, -1")
    if stamps:
        stamp(5)
        stamp_store([(5, 5)], 0, 68)
        stamp_store([(1, 0), (2, 1), (3, 3), (4, 4)], 1, 68)
        e("s_mov_b64 exec, -1")
    e(f"s_cmp_lg_u32 s{sG}, 0\ns_cbranch_scc1 L_end")
    e(f"s_mov_b32 s{sGB}, {WS_Y + 128*3072}")
    gather(128, 3072, sGB, 2, "e", reduce=False)
    e(f"v_mov_b32 v2, {WS_EP}\ns_mov_b64 exec, 1")
    e(f"buffer_store_dword v3, v2, s[{SWS}:{SWS+3}], 0 offen sc1")
    e("s_endpgm")
    e.vm = []
    e("L_down:")
    FM = [8, 9, 10, 11]; FX = 12; FY = 16; FH = [20, 24, 28, 32]; FD = 36; FT0 = 56; FT1 = 57; VWD = 58; PA = 59; PV = 60; FR0 = 72
    NFS = (168 - FR0)//4
    SWD = SW; SWD2 = SK; SP2 = SV
    srd(e, SWD, 20, 21, 0 if dtest == 2 else 4608*1152)
    e(f"s_cmp_eq_u32 s{sD}, 2\ns_cselect_b32 s{sT}, {0 if dtest == 2 else 4608*1152}, 0\ns_cselect_b32 s{sT2}, {WS_SIZE}, 0")
    e(f"s_cselect_b32 s{SWD2+2}, 0, {32*1152}\ns_sub_u32 s{SWD2}, s20, s{SWD2+2}\ns_subb_u32 s{SWD2+1}, s21, 0\ns_mov_b32 s{SWD2+2}, s{sT}\ns_mov_b32 s{SWD2+3}, 0x20000")
    e(f"s_mov_b32 s{SP2}, s26\ns_mov_b32 s{SP2+1}, s27\ns_mov_b32 s{SP2+2}, s{sT2}\ns_mov_b32 s{SP2+3}, 0x20000")
    e(f"v_lshrrev_b32 v{FT1}, 4, v{LANE}\nv_add_u32 v{FT1}, s{sF0}, v{FT1}\nv_mul_u32_u24 v{FT1}, 1152, v{FT1}\nv_and_b32 v{FT0}, 15, v{LANE}\nv_lshl_add_u32 v{VWD}, v{FT0}, 4, v{FT1}")
    dn = [0]; dorder = []
    def wd_issue():
        n = dn[0]
        if n >= 80: return
        dn[0] += 1
        rg, t = n//5, n % 5
        if len(dorder) >= WD and dorder[-WD] in e.vm: e.wait(dorder[-WD])
        s = SWD if rg < 8 else SWD2
        e(f"s_mov_b32 s{sT2}, {rg*4608}")
        e.vmem(f"buffer_load_dwordx4 {q(FR0+4*(n%NFS))}, v{VWD}, s[{s}:{s+3}], s{sT2} offen offset:{256*t}{df}", f"d{n}")
        dorder.append(f"d{n}")
    e(f"s_lshr_b32 s{sT}, s{sF0}, 7\ns_lshl_b32 s{sT}, s{sT}, 12")
    e(f"v_lshrrev_b32 v{PA}, 5, v{LANE}\nv_lshlrev_b32 v{PA}, 10, v{PA}\nv_and_b32 v{FT1}, 31, v{LANE}\nv_lshl_add_u32 v{PA}, v{FT1}, 3, v{PA}")
    e(f"s_and_b32 s{sT2}, s{sF0}, 127\ns_lshl_b32 s{sT2}, s{sT2}, 3\ns_add_u32 s{sT}, s{sT}, s{sT2}\ns_add_u32 s{sT}, s{sT}, {WS_P0 + 64*2048}")
    e(f"v_add_u32 v{PA}, s{sT}, v{PA}")
    masks(e, FM, LANE, FX, FX+1)
    e(f"s_mov_b32 s{sT}, {72*2048}\ns_cmp_eq_u32 s{sD}, 2\ns_cselect_b32 s{sTAG2}, s{sTAG}, 0")
    PG = FD
    ld = []; ck = []
    for hb in range(2):
        s_ = SWS if hb == 0 else SP2
        for k, (so, of) in enumerate((("0", 0), ("0", 2048), (f"s{sT}", 0), (f"s{sT}", 2048))):
            r = PG + 8*hb + 2*k
            ld.append(f"buffer_load_dwordx2 {d2(r)}, v{PA}, s[{s_}:{s_+3}], {so} offen offset:{of+256*hb} sc1")
            ck.append(f"v_xor_b32 v{FX+(k if hb == 0 else 4+k)}, s{sTAG if hb == 0 else sTAG2}, v{r+1}")
    ck.append(f"v_or3_b32 v{FX}, v{FX}, v{FX+1}, v{FX+2}\nv_or3_b32 v{FX}, v{FX}, v{FX+3}, v{FX+4}\nv_or3_b32 v{FX}, v{FX}, v{FX+5}, v{FX+6}\nv_or_b32 v{FX}, v{FX}, v{FX+7}\nv_cmp_ne_u32 vcc, 0, v{FX}")
    spin("\n".join(ld), "\n".join(ck), 8, "d")
    for hb in range(2):
        for k in range(4): e(f"v_mov_b32 v{PV+4*hb+k}, v{PG+8*hb+2*k}")
    for _ in range(WD): wd_issue()
    e(f"v_lshrrev_b32 v{FT0}, 5, v{LANE}\nv_lshlrev_b32 v{FT0}, 7, v{FT0}\nv_and_b32 v{FT1}, 3, v{LANE}\nv_lshl_add_u32 v{FT0}, v{FT1}, 5, v{FT0}")
    e(f"v_bfe_u32 v{FT1}, v{LANE}, 2, 3\nv_lshl_add_u32 v{FT0}, v{FT1}, 2, v{FT0}")
    for r in range(20): e(f"v_mov_b32 v{FD+r}, 0")
    K1 = f32(0.044715); K2 = f32(-2.0*0.7978845608028654*LOG2E)
    e(f"s_mov_b32 s{sT}, {hx(K1)}")
    for hb in range(2):
        g = PV+4*hb; u = g+2; a = g+1
        e(f"v_add_f32 v{g}, v{g}, v{g+1}\nv_add_f32 v{u}, v{u}, v{u+1}")
        bf16r(e, g, g); bf16r(e, u, u)
        e(f"v_mul_f32 v{a}, v{g}, v{g}\nv_fma_f32 v{a}, v{a}, s{sT}, 1.0\nv_mul_f32 v{a}, v{a}, v{g}\nv_mul_f32 v{a}, {hx(K2)}, v{a}")
        e(f"v_exp_f32 v{a}, v{a}\ns_nop 0\nv_add_f32 v{a}, 1.0, v{a}\nv_rcp_f32 v{a}, v{a}\ns_nop 0\nv_mul_f32 v{a}, v{a}, v{g}")
        bf16r(e, a, a)
        e(f"v_mul_f32 v{a}, v{a}, v{u}\nv_cvt_pk_bf16_f32 v{a}, v{a}, v{a}")
        e(f"ds_write_b32 v{FT0}, v{a} offset:{L_H+256*hb}")
    e(f"v_bfe_u32 v{FT0}, v{LANE}, 3, 1\nv_lshlrev_b32 v{FT0}, 7, v{FT0}\nv_lshrrev_b32 v{FT1}, 4, v{LANE}\nv_lshl_add_u32 v{FT0}, v{FT1}, 5, v{FT0}")
    e("s_waitcnt lgkmcnt(0)")
    for j in range(4): e(f"ds_read_b128 {q(FH[j])}, v{FT0} offset:{L_H+256*(j//2)+16*(j%2)}")
    stamp(3)
    e("s_waitcnt lgkmcnt(0)")
    for n in range(80):
        rg, t = n//5, n % 5
        D = FX if rg % 2 == 0 else FY
        if t == 0:
            for w in range(4): e(f"v_and_b32 v{D+w}, v{FH[rg//4] + rg%4}, v{FM[w]}")
            e("s_nop 0")
        wd_issue()
        if f"d{n}" in e.vm: e.wait(f"d{n}")
        e(f"v_mfma_f32_16x16x32_bf16 {q(FD+4*t)}, {q(D)}, {q(FR0+4*(n%NFS))}, {q(FD+4*t)}")
    e(f"v_and_b32 v{FT0}, 15, v{LANE}\nv_lshlrev_b32 v{FT0}, 5, v{FT0}\nv_and_b32 v{FT1}, 16, v{LANE}\nv_add_u32 v{FT0}, v{FT0}, v{FT1}")
    e(f"v_lshrrev_b32 v{FT1}, 5, v{LANE}\nv_mul_u32_u24 v{FT1}, 2560, v{FT1}\nv_add_u32 v{FT0}, v{FT0}, v{FT1}")
    e(f"s_mul_i32 s{sT}, s{sFP}, 6144\ns_add_u32 s{sT}, s{sT}, {WS_FP}")
    e(f"v_lshlrev_b32 v{FT1}, 2, v{LANE}\nv_lshlrev_b32 v{VWD}, 4, v{LANE}\ns_add_u32 s{sT2}, s{sT}, 3072")
    e("s_nop 1")
    for t in range(5): e(f"ds_write_b128 v{FT0}, {q(FD+4*t)} offset:{L_FD+512*t}")
    e("s_waitcnt lgkmcnt(0)")
    for b in range(2):
        for k in range(3):
            g = FR0 + 4*(3*b+k)
            for r in range(3): e(f"ds_read_b32 v{g+r}, v{FT1} offset:{L_FD+2560*b+256*k+768*r}")
            e(f"v_mov_b32 v{g+3}, s{sTAG}")
        e("s_waitcnt lgkmcnt(0)")
        for k in range(3):
            g = FR0 + 4*(3*b+k)
            if dtest != 1: e(f"buffer_store_dwordx4 {q(g)}, v{VWD}, s[{SWS}:{SWS+3}], s{sT if b == 0 else sT2} offen offset:{1024*k} sc1")
    if stamps:
        stamp(4)
        stamp_store([(1, 0), (2, 1), (3, 5), (4, 6)], 1, 12)
    e("s_waitcnt vmcnt(0)")
    e("L_end:")
    e("s_endpgm")
    e.o.append(f'.section .rodata,"a"\n.p2align 6\n.amdhsa_kernel {KN}')
    e.o.append("  .amdhsa_next_free_vgpr 168\n  .amdhsa_next_free_sgpr 90\n  .amdhsa_accum_offset 168")
    e.o.append("  .amdhsa_group_segment_fixed_size 0\n  .amdhsa_kernarg_size 96\n  .amdhsa_user_sgpr_count 2\n  .amdhsa_user_sgpr_kernarg_segment_ptr 1\n  .amdhsa_system_sgpr_workgroup_id_x 1\n  .amdhsa_float_denorm_mode_32 3\n.end_amdhsa_kernel")
    open(name, "w").write("\n".join(e.o) + "\n")

if __name__ == "__main__":
    base = dict(wratio=9, BURST=10, wo_paced=False, W=3)
    gen("parallel_sum__mha_block_cached__geglu_ffn__decode.s", **base)
    gen("h_a.s", **base)
    gen("h_b.s", vf="", **base)
    gen("h_c.s", vf="", wf="", of="", df="", **base)
    gen("h_d.s", kf="", vf="", wf="", of="", df="", **base)
    gen("h_e.s", wf="", of="", df="", **base)
    gen("h_f.s", kf="", **base)
```

```python
import struct, sys
from gen import (KN, f32, hx, HEADER, E, q, d2, DPPF, allreduce, bf16r, ln_norm, masks, srd, LOG2E, SCALE, SPIN_MAX)

WS_Y   = 0x100000
WS_FP  = 0x1C0000
WS_MLW = 0x250000
WS_P0  = 0x260000
WS_EP  = 0x2F0040
WS_SIZE = 0x300000
L_XT = 0; L_QP = 4096; L_QF = 12288; L_YP = 12800; L_H = 33280; L_SY = 34304; L_FD = 34368; L_END = 39488

class Pool:
    def __init__(s, quads): s.free = list(quads)
    def get(s): return s.free.pop(0)
    def put(s, r): s.free.append(r)
    def put_front(s, r): s.free.insert(0, r)

def gen(name, W=3, PRE=26, stamps=False, WD=6, wo_gap=2, catch=2, aux_prio=3, mlr_at=8, coef_at=13, q_sleep=2, pst=False, k_early=0, K0=3, wo_paced=True, f_sleep=64, BURST=8, wratio=2, WEND=8, wend_from=96, nocomp=False, nowo=False, noffn=False, nounit=False, kfill=True, noaux=0, y_sleep=0, dtest=0, kf=' nt', vf=' nt', wf=' nt', of=' nt', df=' nt', dbg=False):
    e = E()
    e.o.append(HEADER.rstrip("\n"))
    e.o.append(f"; @launch grid=(256,1,1) block=(576,1,1) lds={L_END}")
    e.o.append('.amdgcn_target "amdgcn-amd-amdhsa--gfx950"\n.text')
    e.o.append(f".globl {KN}\n.p2align 8\n.type {KN},@function\n{KN}:")
    SK, SV, SW, SX, SWS, SWO = 28, 32, 36, 40, 44, 48
    sH, sB, sS, sBH, sT, sKV, sT2, sSPIN, sROW, sSTR = 52, 53, 54, 55, 56, 57, 58, 59, 60, 61
    sEX = 62; sST = 64; sU = 84; sU2 = 85; sU3 = 86; sTAG = 87; sTAG2 = 88
    def stamp(i):
        if stamps: e(f"s_memrealtime s[{sST+2*i}:{sST+2*i+1}]")
    def stamp_store(idx_list, region, vt):
        e(f"s_waitcnt lgkmcnt(0)\ns_mov_b64 exec, 1\ns_lshl_b32 s{sT}, s2, 6\ns_add_u32 s{sT}, s{sT}, {16384*region}\nv_mov_b32 v{vt}, s{sT}")
        for i, pos in idx_list:
            e(f"v_mov_b32 v{vt+2}, s{sST+2*i}\nv_mov_b32 v{vt+3}, s{sST+2*i+1}")
            e(f"buffer_store_dwordx2 {d2(vt+2)}, v{vt}, s[{SWS}:{SWS+3}], 0 offen offset:{8*pos}\ns_nop 1")
    e("s_cmp_ge_u32 s2, 256\ns_cbranch_scc1 L_end")
    stamp(0)
    if dbg: e("s_memrealtime s[64:65]")
    e("s_load_dwordx16 s[4:19], s[0:1], 0\ns_load_dwordx8 s[20:27], s[0:1], 64")
    e("v_lshrrev_b32 v1, 6, v0\nv_and_b32 v0, 63, v0")
    e(f"s_and_b32 s{sH}, s2, 31")
    e("v_readfirstlane_b32 s3, v1")
    e(f"s_bfe_u32 s{sB}, s2, 0x10005\ns_lshr_b32 s{sS}, s2, 6")
    e(f"s_lshl_b32 s{sBH}, s{sB}, 5\ns_add_u32 s{sBH}, s{sBH}, s{sH}")
    e(f"s_lshl_b32 s{sROW}, s{sBH}, 2\ns_add_u32 s{sROW}, s{sROW}, s{sS}")
    e(f"s_mov_b32 s{sSPIN}, 0")
    e(f"s_lshr_b32 s{sU}, s2, 1")
    e("s_waitcnt lgkmcnt(0)")
    if pst: stamp(6)
    srd(e, SWS, 26, 27, WS_SIZE)
    e("s_cmp_eq_u32 s3, 8\ns_cbranch_scc1 L_aux")

    LANE = 0; VKV = 1; M = [2, 3, 4, 5]; QF = 6; T0 = 10; T1 = 11
    ACC = 12; X = 16; Y = 20; S0 = 24; MX = 164; LS = 165; VO = 166; FL = 167
    pool = Pool(range(40, 164, 4))
    e(f"s_min_u32 s{sU}, s{sU}, 103")
    e(f"s_cmp_lt_u32 s{sU}, 68\ns_cselect_b64 s[{SW}:{SW+1}], s[16:17], s[18:19]\ns_cselect_b32 s{sT}, 32, 68")
    e(f"s_cmp_lt_u32 s{sU}, 32\ns_cselect_b64 s[{SW}:{SW+1}], s[10:11], s[{SW}:{SW+1}]\ns_cselect_b32 s{sT}, 0, s{sT}")
    e(f"s_cselect_b32 s{sSTR}, 8, 9\ns_lshl_b32 s{sSTR}, s{sSTR}, 10\ns_mul_i32 s{SW+2}, s{sSTR}, 576")
    e(f"s_cmp_lt_u32 s2, {0 if nounit else 208}\ns_cselect_b32 s{SW+2}, s{SW+2}, 0\ns_mov_b32 s{SW+3}, 0x20000")
    e(f"s_sub_u32 s{sT}, s{sU}, s{sT}\ns_lshl_b32 s{sT}, s{sT}, 8")
    e(f"s_and_b32 s{sU2}, s2, 1\ns_mul_i32 s{sU2}, s{sU2}, 288\ns_mul_i32 s{sT2}, s3, 36\ns_add_u32 s{sU2}, s{sU2}, s{sT2}")
    e(f"s_mul_i32 s{sT2}, s{sU2}, s{sSTR}\ns_add_u32 s{sT}, s{sT}, s{sT2}")
    srd(e, SX, 4, 5, 2304)
    xq = [pool.free.pop() for _ in range(8)]
    XA = [xq[0]+i for i in range(4)] + [xq[1]+i for i in range(4)] + [xq[2]]; XO = xq[2]+1
    TMP = [xq[2]+2, xq[2]+3] + [xq[k]+i for k in range(3, 7) for i in range(4)]
    e(f"v_mul_u32_u24 v{T0}, 36, v{LANE}")
    e.vmem(f"buffer_load_dwordx4 {q(xq[0])}, v{T0}, s[{SX}:{SX+3}], 0 offen", "x")
    e.vmem(f"buffer_load_dwordx4 {q(xq[1])}, v{T0}, s[{SX}:{SX+3}], 0 offen offset:16", "x")
    e.vmem(f"buffer_load_dword v{xq[2]}, v{T0}, s[{SX}:{SX+3}], 0 offen offset:32", "x")
    e(f"v_lshrrev_b32 v{T0}, 5, v{LANE}\nv_mul_u32_u24 v{T0}, 1152, v{T0}\nv_and_b32 v{T1}, 31, v{LANE}\nv_lshl_add_u32 v{T0}, v{T1}, 2, v{T0}")
    e(f"s_lshl_b32 s{sT2}, s{sU2}, 1\nv_add_u32 v{T1}, s{sT2}, v{T0}")
    e.vmem(f"buffer_load_dword v{XO}, v{T1}, s[{SX}:{SX+3}], 0 offen", "x")
    e(f"v_lshrrev_b32 v{VO}, 4, v{LANE}\nv_mul_lo_u32 v{VO}, v{VO}, s{sSTR}\nv_and_b32 v{FL}, 15, v{LANE}\nv_lshl_add_u32 v{VO}, v{FL}, 4, v{VO}")
    e(f"s_lshl_b32 s{sSTR}, s{sSTR}, 2")
    WQ = [pool.free.pop() for _ in range(9)]
    sWO = sU3
    e(f"s_mov_b32 s{sWO}, s{sT}")
    srd(e, SK, 6, 7, 0x8000000); srd(e, SV, 8, 9, 0x8000000); srd(e, SWO, 12, 13, 4096*1152)
    e(f"v_lshlrev_b32 v{VKV}, 4, v{LANE}")
    e(f"s_lshl_b32 s{sKV}, s{sBH}, 21\ns_lshl_b32 s{sT}, s{sS}, 19\ns_add_u32 s{sKV}, s{sKV}, s{sT}\ns_lshl_b32 s{sT}, s3, 12\ns_add_u32 s{sKV}, s{sKV}, s{sT}")
    slot = {}
    order = []
    kvn = [0]; won = [0]
    WO = {}
    def pace():
        w = WEND if kvn[0] > wend_from else W
        if len(order) >= w:
            tg = order[-w]
            if tg in e.vm: e.wait(tg)
    wn = [0]; mix = [0]
    def w_issue(paced=True):
        n = wn[0]; wn[0] += 1
        if paced: pace()
        e.vmem(f"buffer_load_dwordx4 {q(WQ[n])}, v{VO}, s[{SW}:{SW+3}], s{sWO} offen{wf}", f"w{n}")
        if n < 8: e(f"s_add_u32 s{sWO}, s{sWO}, s{sSTR}")
        order.append(f"w{n}")
    def seq_issue(paced=True):
        if wn[0] < 9 and mix[0] < wratio:
            mix[0] += 1; w_issue(paced)
        else:
            mix[0] = 0; kv_issue(paced)
    def kv_issue(paced=True):
        n = kvn[0]
        if n >= 128: return False
        if n >= 4 and not pool.free: return False
        kvn[0] += 1
        slot[n] = S0 + 4*n if n < 4 else pool.get()
        if paced: pace()
        t, i = (n % 64)//4, n % 4
        s = SK if n < 64 else SV
        e(f"s_add_u32 s{sT2}, s{sKV}, {t*32768}")
        e.vmem(f"buffer_load_dwordx4 {q(slot[n])}, v{VKV}, s[{s}:{s+3}], s{sT2} offen offset:{1024*i}{kf if n < 64 else vf}", f"kv{n}")
        order.append(f"kv{n}")
        return True
    def wo_issue():
        n = won[0]
        if n >= 20 or len(pool.free) < 5: return False
        won[0] += 1
        rg, t = n//5, n % 5
        WO[n] = pool.get()
        if nowo: return True
        if wo_paced: pace()
        e(f"s_movk_i32 s{sT2}, {rg*4608}")
        e.vmem(f"buffer_load_dwordx4 {q(WO[n])}, v{FL}, s[{SWO}:{SWO+3}], s{sT2} offen offset:{t*256}{of}", f"wo{n}")
        if wo_paced: order.append(f"wo{n}")
        return True
    for _ in range(BURST): seq_issue(paced=False)
    e("s_barrier")
    masks(e, M, LANE, T0, T1)
    MEAN, SD, RINV = ACC, ACC+1, ACC+2
    if pst: stamp(7)
    e.wait("x")
    if pst: stamp(8)
    for k in range(9):
        e(f"v_lshlrev_b32 v{TMP[2*k]}, 16, v{XA[k]}\nv_and_b32 v{TMP[2*k+1]}, 0xffff0000, v{XA[k]}")
    e(f"v_add_f32 v{MEAN}, v{TMP[0]}, v{TMP[1]}\nv_add_f32 v{SD}, v{TMP[2]}, v{TMP[3]}")
    for k in range(4, 18, 2): e(f"v_add_f32 v{MEAN}, v{MEAN}, v{TMP[k]}\nv_add_f32 v{SD}, v{SD}, v{TMP[k+1]}")
    e(f"v_add_f32 v{MEAN}, v{MEAN}, v{SD}")
    allreduce(e, "add", MEAN, T0, x32=False)
    e(f"v_mul_f32 v{MEAN}, {hx(f32(1.0/576))}, v{MEAN}")
    for k in range(18): e(f"v_sub_f32 v{TMP[k]}, v{TMP[k]}, v{MEAN}")
    e(f"v_mul_f32 v{SD}, v{TMP[0]}, v{TMP[0]}\nv_mul_f32 v{RINV}, v{TMP[1]}, v{TMP[1]}")
    for k in range(2, 18, 2): e(f"v_fmac_f32 v{SD}, v{TMP[k]}, v{TMP[k]}\nv_fmac_f32 v{RINV}, v{TMP[k+1]}, v{TMP[k+1]}")
    e(f"v_add_f32 v{SD}, v{SD}, v{RINV}")
    allreduce(e, "add", SD, T0, x32=False)
    e(f"v_mul_f32 v{SD}, {hx(f32(1.0/576))}, v{SD}")
    bf16r(e, SD, SD)
    e(f"v_add_f32 v{SD}, {hx(f32(1e-5))}, v{SD}")
    bf16r(e, SD, SD)
    e(f"v_sqrt_f32 v{SD}, v{SD}\ns_nop 0")
    bf16r(e, SD, SD)
    e(f"v_rcp_f32 v{RINV}, v{SD}")
    bf16r(e, MEAN, MEAN)
    e(f"v_lshlrev_b32 v{X}, 16, v{XO}\nv_and_b32 v{X+1}, 0xffff0000, v{XO}")
    ln_norm(e, X+2, X, MEAN, SD, RINV, T0, T1)
    ln_norm(e, X+3, X+1, MEAN, SD, RINV, T0, T1)
    e(f"s_lshl_b32 s{sT}, s3, 9")
    e(f"v_lshrrev_b32 v{T0}, 5, v{LANE}\nv_lshlrev_b32 v{T0}, 8, v{T0}\nv_and_b32 v{T1}, 1, v{LANE}\nv_lshl_add_u32 v{T0}, v{T1}, 7, v{T0}")
    e(f"v_bfe_u32 v{T1}, v{LANE}, 1, 4\nv_lshl_add_u32 v{T0}, v{T1}, 2, v{T0}\nv_add_u32 v{T0}, s{sT}, v{T0}")
    e(f"ds_write_b32 v{T0}, v{X+2} offset:{L_XT}\nds_write_b32 v{T0}, v{X+3} offset:{L_XT+64}")
    e(f"v_bfe_u32 v{T0}, v{LANE}, 3, 1\nv_lshlrev_b32 v{T0}, 8, v{T0}\nv_lshrrev_b32 v{T1}, 4, v{LANE}\nv_lshl_add_u32 v{T0}, v{T1}, 6, v{T0}\nv_add_u32 v{T0}, s{sT}, v{T0}")
    if pst: stamp(9)
    e("s_waitcnt lgkmcnt(0)")
    X2 = [xq[3]+i for i in range(4)] + [xq[4]+i for i in range(4)] + [xq[5]]
    e(f"ds_read_b128 {q(xq[3])}, v{T0} offset:{L_XT}\nds_read_b128 {q(xq[4])}, v{T0} offset:{L_XT+16}\nds_read_b32 v{xq[5]}, v{T0} offset:{L_XT+32}")
    for r in range(4): e(f"v_mov_b32 v{ACC+r}, 0")
    e(f"v_and_b32 v{LS}, 15, v{LANE}\nv_lshlrev_b32 v{LS}, 5, v{LS}\nv_and_b32 v{T1}, 16, v{LANE}\nv_add_u32 v{LS}, v{LS}, v{T1}")
    e(f"v_lshrrev_b32 v{T1}, 5, v{LANE}\nv_lshl_add_u32 v{T0}, v{T1}, 9, v{LS}\ns_lshl_b32 s{sT}, s3, 10\nv_add_u32 v{T0}, s{sT}, v{T0}")
    for r in (xq[0], xq[1], xq[2], xq[6], xq[7]): pool.put(r)
    e("s_waitcnt lgkmcnt(0)")
    for n in range(9):
        D = X if n % 2 == 0 else Y
        while wn[0] <= min(8, n + 2): seq_issue()
        for w in range(4): e(f"v_and_b32 v{D+w}, v{X2[n]}, v{M[w]}")
        if f"w{n}" in e.vm: e.wait(f"w{n}")
        else: e("s_nop 0")
        e("s_nop 0")
        e(f"v_mfma_f32_16x16x32_bf16 {q(ACC)}, {q(D)}, {q(WQ[n])}, {q(ACC)}")
        if kfill and wn[0] == 9: kv_issue(paced=False)
        pool.put(WQ[n])
    for r in (xq[3], xq[4], xq[5]): pool.put(r)
    e(f"v_mov_b32 v{VO}, v{LS}\nv_mov_b32 v{T1}, 1\nv_mov_b32 v{X}, 0")
    e("s_nop 5")
    e(f"ds_write_b128 v{T0}, {q(ACC)} offset:{L_QP}")
    e(f"s_waitcnt lgkmcnt(0)\ns_mov_b64 exec, 1\nds_add_u32 v{X}, v{T1} offset:{L_SY}\ns_mov_b64 exec, -1")
    stamp(5)
    e(f"v_lshrrev_b32 v{T1}, 4, v{LANE}\nv_mul_u32_u24 v{T1}, 1152, v{T1}\nv_and_b32 v{T0}, 15, v{LANE}\nv_lshlrev_b32 v{T0}, 4, v{T0}\nv_add_u32 v{FL}, v{T1}, v{T0}")
    e(f"s_lshl_b32 s{sT}, s{sH}, 7\ns_lshl_b32 s{sT2}, s3, 4\ns_add_u32 s{sT}, s{sT}, s{sT2}\ns_mul_i32 s{sT}, s{sT}, 1152\nv_add_u32 v{FL}, s{sT}, v{FL}")
    e(f"v_mov_b32 v{MX}, 0xff800000")
    while kvn[0] < PRE: assert kv_issue()
    lp = e.label("qw"); ok = e.label("qok")
    e(f"{lp}:")
    e(f"ds_read_b32 v{T1}, v{X} offset:{L_SY+4}\ns_waitcnt lgkmcnt(0)\nv_cmp_eq_u32 vcc, 0, v{T1}\ns_cbranch_vccz {ok}")
    e(f"s_add_u32 s{sSPIN}, s{sSPIN}, 1\ns_cmp_gt_u32 s{sSPIN}, {SPIN_MAX*20}\ns_cbranch_scc1 {ok}\ns_sleep 2\ns_branch {lp}")
    e(f"{ok}:")
    e(f"s_mov_b32 s{sSPIN}, 0")
    e(f"ds_read_b128 {q(QF)}, v{T0} offset:{L_QF}")
    e(f"ds_read_b32 v{T1}, v{X} offset:{L_QF+256}")
    stamp(2)
    e("s_waitcnt lgkmcnt(0)")
    e(f"v_readfirstlane_b32 s{sTAG}, v{T1}")
    def ctile(t):
        if f"kv{4*t+3}" in e.vm: e.wait(f"kv{4*t+3}")
        for j in range(4):
            for i in range(4):
                if nocomp: continue
                r = slot[4*t+i] + j
                if j == 0: e(f"v_dot2_f32_bf16 v{X+i}, v{r}, v{QF}, 0")
                else: e(f"v_dot2c_f32_bf16 v{X+i}, v{r}, v{QF+j}")
        if t > 0:
            for i in range(4): pool.put(slot[4*t+i])
        if nocomp: return
        e("s_nop 2")
        e(f"v_add_f32_dpp v{X}, v{X}, v{X} row_ror:8 row_mask:0xf bank_mask:0x3")
        e(f"v_add_f32_dpp v{X}, v{X+2}, v{X+2} row_ror:8 row_mask:0xf bank_mask:0xc")
        e(f"v_add_f32_dpp v{X+1}, v{X+1}, v{X+1} row_ror:8 row_mask:0xf bank_mask:0x3")
        e(f"v_add_f32_dpp v{X+1}, v{X+3}, v{X+3} row_ror:8 row_mask:0xf bank_mask:0xc")
        e("s_nop 0")
        e(f"v_add_f32_dpp v{X}, v{X}, v{X} row_shl:4 row_mask:0xf bank_mask:0x5")
        e("s_nop 0")
        e(f"v_add_f32_dpp v{X}, v{X+1}, v{X+1} row_shr:4 row_mask:0xf bank_mask:0xa")
        e("s_nop 1")
        e(f"v_add_f32_dpp v{X}, v{X}, v{X} quad_perm:[1,0,3,2] {DPPF}")
        e("s_nop 1")
        e(f"v_add_f32_dpp v{X}, v{X}, v{X} quad_perm:[2,3,0,1] {DPPF}")
        bf16r(e, X, X)
        e(f"v_mul_f32 v{X}, {hx(f32(SCALE))}, v{X}")
        bf16r(e, S0+t, X)
        e(f"v_max_f32 v{MX}, v{MX}, v{S0+t}")
    t = 0; since_wo = 0
    while t < 16:
        lag = kvn[0] - 4*t
        if lag >= 4 + W + 4*(catch-1) + 4:
            for _ in range(catch):
                if t < 16: ctile(t); t += 1
            kv_issue()
        elif lag >= 4 + W:
            ctile(t); t += 1
        else:
            kv_issue(); since_wo += 1
            if since_wo >= wo_gap and wo_issue(): since_wo = 0
    stamp(3)
    allreduce(e, "max", MX, T0, rors=(8, 4))
    e(f"v_mul_f32 v{MX}, {hx(f32(LOG2E))}, v{MX}\ns_mov_b32 s{sT}, {hx(f32(LOG2E))}\nv_mov_b32 v{LS}, 0")
    for t in range(8): e(f"v_fma_f32 v{S0+t}, v{S0+t}, s{sT}, -v{MX}")
    for t in range(8): e(f"v_exp_f32 v{S0+t}, v{S0+t}")
    kv_issue()
    for t in range(8, 16): e(f"v_fma_f32 v{S0+t}, v{S0+t}, s{sT}, -v{MX}")
    for t in range(8, 16): e(f"v_exp_f32 v{S0+t}, v{S0+t}")
    kv_issue()
    for t in range(16):
        e(f"v_add_f32 v{LS}, v{LS}, v{S0+t}\nv_cvt_pk_bf16_f32 v{S0+t}, v{S0+t}, v{S0+t}")
    kv_issue()
    allreduce(e, "add", LS, T0, rors=(8, 4))
    e(f"s_lshl_b32 s{sT}, s{sBH}, 9\ns_add_u32 s{sT}, s{sT}, {WS_MLW}\ns_lshl_b32 s{sT2}, s{sS}, 7\ns_add_u32 s{sT2}, s{sT2}, s{sT}")
    e(f"s_lshl_b32 s{sEX}, s3, 4\ns_add_u32 s{sT2}, s{sT2}, s{sEX}\nv_mov_b32 v{T0}, s{sT2}")
    e(f"v_mov_b32 v{Y}, v{MX}\nv_mov_b32 v{Y+1}, v{LS}\nv_mov_b32 v{Y+2}, 0\nv_mov_b32 v{Y+3}, s{sTAG}")
    e("s_mov_b64 exec, 1")
    e.vmem(f"buffer_store_dwordx4 {q(Y)}, v{T0}, s[{SWS}:{SWS+3}], 0 offen sc1", "mlst")
    e("s_mov_b64 exec, -1")
    e(f"v_and_b32 v{T0}, 31, v{LANE}\nv_lshlrev_b32 v{T0}, 4, v{T0}\nv_add_u32 v{T0}, s{sT}, v{T0}")
    for r in range(4): e(f"v_mov_b32 v{ACC+r}, 0")
    MLR = QF
    def diag(dst, n):
        t, i = (n-64)//4, n % 4
        if nocomp: return
        for w in range(4): e(f"v_and_b32_dpp v{dst+w}, v{S0+t}, v{M[w]} row_newbcast:{4*i} {DPPF}")
    diag(X, 64)
    for n in range(64, 128):
        cur = X if n % 2 == 0 else Y; nxt = Y if n % 2 == 0 else X
        while kvn[0] < min(128, n + W + 1):
            kv_issue(); since_wo += 1
            if since_wo >= wo_gap and wo_issue(): since_wo = 0
        if n + 1 < 128: diag(nxt, n+1)
        else: e("s_nop 1")
        if f"kv{n}" in e.vm: e.wait(f"kv{n}")
        if not nocomp: e(f"v_mfma_f32_16x16x32_bf16 {q(ACC)}, {q(cur)}, {q(slot[n])}, {q(ACC)}")
        pool.put(slot[n])
        if n == 64 + 4*mlr_at and not noaux:
            e.vmem(f"buffer_load_dwordx4 {q(MLR)}, v{T0}, s[{SWS}:{SWS+3}], 0 offen sc1", "mlr")
        if n == 64 + 4*coef_at:
            ok = e.label("mok"); lp = e.label("mlp")
            if "mlr" in e.vm: e.wait("mlr")
            if noaux: e(f"s_branch {ok}")
            e(f"{lp}:")
            e(f"v_cmp_ne_u32 vcc, s{sTAG}, v{MLR+3}\ns_cbranch_vccz {ok}")
            e(f"s_add_u32 s{sSPIN}, s{sSPIN}, 1\ns_cmp_gt_u32 s{sSPIN}, {SPIN_MAX}\ns_cbranch_scc1 {ok}")
            e(f"s_sleep 8\nbuffer_load_dwordx4 {q(MLR)}, v{T0}, s[{SWS}:{SWS+3}], 0 offen sc1\ns_waitcnt vmcnt(0)\ns_branch {lp}")
            e(f"{ok}:")
            e(f"v_mov_b32 v{MLR+2}, v{MLR}")
            allreduce(e, "max", MLR+2, MLR+3, x32=False)
            e(f"v_sub_f32 v{MLR}, v{MLR}, v{MLR+2}\nv_exp_f32 v{MLR}, v{MLR}")
            e(f"v_sub_f32 v{MX}, v{MX}, v{MLR+2}\nv_exp_f32 v{MX}, v{MX}")
            e(f"v_mul_f32 v{MLR}, v{MLR}, v{MLR+1}")
            allreduce(e, "add", MLR, MLR+3, x32=False)
            e(f"v_rcp_f32 v{MLR}, v{MLR}\ns_nop 0\nv_mul_f32 v{MX}, v{MX}, v{MLR}")
            e(f"v_bfe_u32 v{T0}, v{LANE}, 1, 3\nv_lshlrev_b32 v{T0}, 6, v{T0}\nv_and_b32 v{T1}, 1, v{LANE}\nv_lshl_add_u32 v{T0}, v{T1}, 3, v{T0}")
            e(f"v_bfe_u32 v{T1}, v{LANE}, 4, 1\nv_lshl_add_u32 v{T0}, v{T1}, 2, v{T0}\ns_lshl_b32 s{sT}, s3, 9\nv_add_u32 v{T0}, s{sT}, v{T0}")
            e(f"v_lshrrev_b32 v{T1}, 4, v{LANE}\nv_lshlrev_b32 v{T1}, 4, v{T1}\ns_lshl_b32 s{sT}, s3, 6\nv_add_u32 v{T1}, s{sT}, v{T1}")
    assert won[0] == 20, won
    stamp(4)
    RB = [pool.get() for _ in range(8)]
    yacc = [S0, S0+4, S0+8, S0+12, pool.get()]
    for t in range(5):
        for r in range(4): e(f"v_mov_b32 v{yacc[t]+r}, 0")
    for r in range(4): e(f"v_mul_f32 v{ACC+r}, v{ACC+r}, v{MX}")
    for r in range(4): e(f"ds_write_b32 v{T0}, v{ACC+r} offset:{L_QP+16*r}")
    e("s_waitcnt lgkmcnt(0)\ns_barrier")
    for j in range(8): e(f"ds_read_b128 {q(RB[j])}, v{T1} offset:{L_QP+512*j}")
    e(f"s_mul_i32 s{sT}, s3, 2560\nv_add_u32 v{T0}, s{sT}, v{VO}")
    for j in range(1, 8):
        e(f"s_waitcnt lgkmcnt({7-j})")
        for r in range(4): e(f"v_add_f32 v{RB[0]+r}, v{RB[0]+r}, v{RB[j]+r}")
    for r in range(4): e(f"v_cvt_pk_bf16_f32 v{RB[0]+r}, v{RB[0]+r}, v{RB[0]+r}")
    if "wo19" in e.vm: e.wait("wo19")
    for rg in range(4):
        cur = X if rg % 2 == 0 else Y
        for w in range(4): e(f"v_and_b32 v{cur+w}, v{RB[0]+rg}, v{M[w]}")
        e("s_nop 1")
        for t in range(5):
            e(f"v_mfma_f32_16x16x32_bf16 {q(yacc[t])}, {q(cur)}, {q(WO[rg*5+t])}, {q(yacc[t])}")
    e(f"s_mul_i32 s{sT}, s3, 96\nv_lshlrev_b32 v{T1}, 2, v{LANE}\nv_add_u32 v{T1}, s{sT}, v{T1}\nv_lshlrev_b32 v{LS}, 2, v{T1}")
    e(f"s_mul_i32 s{sT2}, s{sROW}, 3072\ns_add_u32 s{sT2}, s{sT2}, {WS_Y}")
    for t in range(5):
        if t == 4: e("s_nop 3")
        e(f"ds_write_b128 v{T0}, {q(yacc[t])} offset:{L_YP+512*t}")
    e("s_waitcnt lgkmcnt(0)\ns_barrier")
    e("s_mov_b64 exec, 0xffffff")
    for j in range(8):
        for r in range(3): e(f"ds_read_b32 v{RB[j]+r}, v{T1} offset:{L_YP+2560*j+768*r}")
        if j == 4: e("s_waitcnt lgkmcnt(6)\n" + "\n".join(f"v_add_f32 v{RB[0]+r}, v{RB[0]+r}, v{RB[jj]+r}" for jj in (1, 2) for r in range(3)))
    e(f"v_mov_b32 v{RB[0]+3}, s{sTAG}")
    for j in range(3, 8):
        e(f"s_waitcnt lgkmcnt({3*(7-j)})")
        for r in range(3): e(f"v_add_f32 v{RB[0]+r}, v{RB[0]+r}, v{RB[j]+r}")
    e(f"buffer_store_dwordx4 {q(RB[0])}, v{LS}, s[{SWS}:{SWS+3}], s{sT2} offen sc1")
    if stamps:
        stamp(1)
        e("s_cmp_lg_u32 s3, 0\ns_cbranch_scc1 L_end")
        if pst: stamp_store([(6, 0), (7, 1), (8, 2), (9, 3), (5, 4)], 2, X)
        stamp_store([(0, 0), (1, 1), (2, 2), (3, 3), (4, 4), (5, 6)], 0, X)
        e(f"s_getreg_b32 s{sT}, hwreg(HW_REG_XCC_ID)\nv_mov_b32 v{X+2}, s{sT}\nv_mov_b32 v{X+3}, 0")
        e(f"buffer_store_dwordx2 {d2(X+2)}, v{X}, s[{SWS}:{SWS+3}], 0 offen offset:56")
    e("s_endpgm")

    e.vm = []
    e("L_aux:")
    if aux_prio: e(f"s_setprio {aux_prio}")
    e(f"v_mov_b32 v2, 0\nv_mov_b32 v3, 0\nds_write_b64 v2, v[2:3] offset:{L_SY}\ns_waitcnt lgkmcnt(0)\ns_barrier")
    if noaux == 1:
        e(f"v_mov_b32 v3, 1\nds_write_b32 v2, v3 offset:{L_SY+4}\ns_waitcnt lgkmcnt(0)\ns_endpgm")
    e(f"s_add_u32 s{sEX}, s26, {WS_EP}\ns_addc_u32 s{sEX+1}, s27, 0\ns_load_dword s{sTAG}, s[{sEX}:{sEX+1}], 0")
    sD, sG, sF0, sFP = sU, sU2, sU3, sSTR
    e(f"s_add_u32 s{sFP}, s2, 48\ns_add_u32 s{sF0}, s2, 96\ns_lshl_b32 s{sF0}, s{sF0}, 5")
    e(f"s_cmp_lt_u32 s2, 48\ns_cselect_b32 s{sD}, 1, 0")
    e(f"s_sub_u32 s{sT}, s2, 208\ns_lshl_b32 s{sT2}, s{sT}, 6\ns_cmp_ge_u32 s2, 208")
    e(f"s_cselect_b32 s{sD}, 2, s{sD}\ns_cselect_b32 s{sFP}, s{sT}, s{sFP}\ns_cselect_b32 s{sF0}, s{sT2}, s{sF0}")
    e(f"s_sub_u32 s{sG}, s2, 48")
    GB = 8
    e(f"v_lshlrev_b32 v1, 4, v{LANE}")
    e(f"s_waitcnt lgkmcnt(0)\ns_add_u32 s{sTAG}, s{sTAG}, 1\nv_mov_b32 v3, s{sTAG}\nv_mov_b32 v4, 0")
    e(f"ds_write_b32 v4, v3 offset:{L_QF+256}")
    e(f"s_lshl_b32 s{sT}, s2, 11\ns_add_u32 s{sT}, s{sT}, {WS_P0}\nv_lshlrev_b32 v2, 5, v{LANE}")
    lp = e.label("pw"); ok = e.label("pok")
    e(f"{lp}:")
    e(f"ds_read_b32 v5, v4 offset:{L_SY}\ns_waitcnt lgkmcnt(0)\nv_cmp_ne_u32 vcc, 8, v5\ns_cbranch_vccz {ok}")
    e(f"s_add_u32 s{sSPIN}, s{sSPIN}, 1\ns_cmp_gt_u32 s{sSPIN}, {SPIN_MAX*20}\ns_cbranch_scc1 {ok}\ns_sleep 1\ns_branch {lp}")
    e(f"{ok}:")
    e(f"s_mov_b32 s{sSPIN}, 0")
    for j in range(8): e(f"ds_read_b128 {q(GB+4*j)}, v1 offset:{L_QP+1024*j}")
    for j in range(1, 8):
        e(f"s_waitcnt lgkmcnt({7-j})")
        for r in range(4): e(f"v_add_f32 v{GB+r}, v{GB+r}, v{GB+4*j+r}")
    e(f"v_mov_b32 v{GB+4}, v{GB+2}\nv_mov_b32 v{GB+6}, v{GB+3}\nv_mov_b32 v{GB+2}, v{GB+1}")
    e(f"v_mov_b32 v{GB+1}, v3\nv_mov_b32 v{GB+3}, v3\nv_mov_b32 v{GB+5}, v3\nv_mov_b32 v{GB+7}, v3")
    e(f"buffer_store_dwordx4 {q(GB)}, v2, s[{SWS}:{SWS+3}], s{sT} offen sc1")
    e(f"buffer_store_dwordx4 {q(GB+4)}, v2, s[{SWS}:{SWS+3}], s{sT} offen offset:16 sc1")
    stamp(1)
    e(f"v_lshrrev_b32 v5, 5, v{LANE}\nv_lshlrev_b32 v5, 11, v5\nv_and_b32 v6, 31, v{LANE}\nv_lshl_add_u32 v5, v6, 5, v5")
    e(f"s_lshl_b32 s{sT}, s{sH}, 12\ns_lshl_b32 s{sT2}, s{sB}, 10\ns_add_u32 s{sT}, s{sT}, s{sT2}\ns_add_u32 s{sT}, s{sT}, {WS_P0}")
    def spin(loadtxt, cmptxt, sleep, tag):
        ok = e.label(tag+"ok"); lp = e.label(tag+"lp")
        e(f"{lp}:")
        e(loadtxt + "\ns_waitcnt vmcnt(0)")
        e(cmptxt + f"\ns_cbranch_vccz {ok}")
        e(f"s_add_u32 s{sSPIN}, s{sSPIN}, 1\ns_cmp_gt_u32 s{sSPIN}, {SPIN_MAX}\ns_cbranch_scc1 {ok}")
        if sleep: e(f"s_sleep {sleep}")
        e(f"s_branch {lp}")
        e(f"{ok}:")
    QG = GB + 8
    if noaux == 2:
        e(f"v_mov_b32 v5, 1\nds_write_b32 v4, v5 offset:{L_SY+4}\ns_waitcnt lgkmcnt(0)\ns_endpgm")
    spin(f"buffer_load_dwordx4 {q(QG)}, v5, s[{SWS}:{SWS+3}], s{sT} offen sc1\nbuffer_load_dwordx4 {q(QG+4)}, v5, s[{SWS}:{SWS+3}], s{sT} offen offset:16 sc1",
         f"v_xor_b32 v7, v3, v{QG+1}\nv_xor_b32 v{GB}, v3, v{QG+3}\nv_xor_b32 v{GB+1}, v3, v{QG+5}\nv_xor_b32 v{GB+2}, v3, v{QG+7}\nv_or3_b32 v7, v7, v{GB}, v{GB+1}\nv_or_b32 v7, v7, v{GB+2}\nv_cmp_ne_u32 vcc, 0, v7", q_sleep, "q")
    e(f"v_lshlrev_b32 v6, 3, v6")
    for r in range(4): e(f"v_mov_b32 v{GB+r}, v{QG+2*r}\nv_mov_b32 v{GB+4+r}, v{QG+2*r}")
    e("s_nop 1")
    for r in range(4): e(f"v_permlane32_swap_b32 v{GB+r}, v{GB+4+r}")
    e("s_nop 1")
    for r in range(4): e(f"v_add_f32 v{GB+r}, v{GB+r}, v{GB+4+r}")
    e(f"v_cvt_pk_bf16_f32 v{GB}, v{GB}, v{GB+1}\nv_cvt_pk_bf16_f32 v{GB+1}, v{GB+2}, v{GB+3}")
    e(f"ds_write_b64 v6, {d2(GB)} offset:{L_QF}")
    e(f"v_mov_b32 v5, 1\ns_waitcnt lgkmcnt(0)\nds_write_b32 v4, v5 offset:{L_SY+4}")
    stamp(2)
    if dbg: e("s_memrealtime s[66:67]")
    e("s_waitcnt lgkmcnt(0)")
    if aux_prio: e("s_setprio 0")
    if noaux == 3: e("s_endpgm")
    e(f"s_cmp_lg_u32 s{sD}, 0\ns_cbranch_scc1 {'L_end' if noffn else 'L_down'}")
    e(f"s_cmp_lt_u32 s{sG}, 96\ns_cbranch_scc1 L_fin")
    if stamps: stamp_store([(1, 0), (2, 1)], 1, 4)
    e("s_endpgm")
    e("L_fin:")
    sFB, sCB = sB, sH
    e(f"s_cmp_ge_u32 s{sG}, 48\ns_cselect_b32 s{sFB}, 1, 0\ns_mul_i32 s{sT}, s{sFB}, 48\ns_sub_u32 s{sCB}, s{sG}, s{sT}")
    def gather(nrows, stride, base_s, sleep, tagp, seq=False, reduce=True):
        nk = nrows//16; assert nrows % 16 == 0
        e(f"v_lshrrev_b32 v1, 2, v{LANE}\ns_mov_b32 s{sT2}, {stride}\nv_mul_lo_u32 v1, v1, s{sT2}\nv_and_b32 v2, 3, v{LANE}\nv_lshl_add_u32 v1, v2, 4, v1")
        e(f"v_not_b32 v2, v3")
        for k in range(nk): e(f"v_mov_b32 v{GB+4*k+3}, v2")
        if seq:
            e(f"s_mov_b32 s{sT2}, s{base_s}")
            for k in range(nk):
                lp = e.label(tagp+"lp"); ok = e.label(tagp+"ok"); g = GB + 4*k
                e(f"{lp}:")
                e(f"buffer_load_dwordx4 {q(g)}, v1, s[{SWS}:{SWS+3}], s{sT2} offen sc1\ns_waitcnt vmcnt(0)\ns_mov_b64 exec, -1")
                e(f"v_cmp_ne_u32 vcc, v3, v{g+3}\ns_cbranch_vccz {ok}")
                e(f"s_add_u32 s{sSPIN}, s{sSPIN}, 1\ns_cmp_gt_u32 s{sSPIN}, {SPIN_MAX}\ns_cbranch_scc1 {ok}")
                e(f"s_mov_b64 exec, vcc\ns_sleep {sleep}\ns_branch {lp}")
                e(f"{ok}:")
                if k < nk-1: e(f"s_add_u32 s{sT2}, s{sT2}, {16*stride}")
        else:
            lp = e.label(tagp+"lp"); ok = e.label(tagp+"ok")
            e(f"{lp}:")
            e(f"s_mov_b64 s[{sEX}:{sEX+1}], 0\ns_mov_b32 s{sT2}, s{base_s}")
            for k in range(nk):
                sk = e.label(tagp+"sk"); g = GB + 4*k
                e(f"v_cmp_ne_u32 vcc, v3, v{g+3}")
                e(f"s_or_b64 s[{sEX}:{sEX+1}], s[{sEX}:{sEX+1}], vcc\ns_mov_b64 exec, vcc\ns_cbranch_execz {sk}")
                e(f"buffer_load_dwordx4 {q(g)}, v1, s[{SWS}:{SWS+3}], s{sT2} offen sc1")
                e(f"{sk}:")
                e("s_mov_b64 exec, -1")
                if k < nk-1: e(f"s_add_u32 s{sT2}, s{sT2}, {16*stride}")
            e(f"s_cmp_eq_u64 s[{sEX}:{sEX+1}], 0\ns_cbranch_scc1 {ok}")
            e(f"s_add_u32 s{sSPIN}, s{sSPIN}, 1\ns_cmp_gt_u32 s{sSPIN}, {SPIN_MAX}\ns_cbranch_scc1 {ok}")
            e("s_waitcnt vmcnt(0)")
            if sleep: e(f"s_sleep {sleep}")
            e(f"s_branch {lp}")
            e(f"{ok}:")
            e("s_waitcnt vmcnt(0)")
        if not reduce: return
        for k in range(1, nk):
            for r in range(3): e(f"v_add_f32 v{GB+r}, v{GB+r}, v{GB+4*k+r}")
        e(f"v_mov_b32 v{GB+3}, 0")
        for rr in (4, 8):
            e("s_nop 1")
            for r in range(3): e(f"v_add_f32_dpp v{GB+r}, v{GB+r}, v{GB+r} row_ror:{rr} {DPPF}")
        e("s_nop 1")
        e(f"v_permlane16_swap_b32 v{GB}, v{GB+1}\nv_permlane16_swap_b32 v{GB+2}, v{GB+3}\ns_nop 1")
        e(f"v_add_f32 v{GB}, v{GB}, v{GB+1}\nv_add_f32 v{GB+2}, v{GB+2}, v{GB+3}\ns_nop 1")
        e(f"v_permlane32_swap_b32 v{GB}, v{GB+2}\ns_nop 1")
        e(f"v_add_f32 v{GB}, v{GB}, v{GB+2}")
    def reduce3(base, nk):
        for k in range(1, nk):
            for r in range(3): e(f"v_add_f32 v{base+r}, v{base+r}, v{base+4*k+r}")
        e(f"v_mov_b32 v{base+3}, 0")
        for rr in (4, 8):
            e("s_nop 1")
            for r in range(3): e(f"v_add_f32_dpp v{base+r}, v{base+r}, v{base+r} row_ror:{rr} {DPPF}")
        e("s_nop 1")
        e(f"v_permlane16_swap_b32 v{base}, v{base+1}\nv_permlane16_swap_b32 v{base+2}, v{base+3}\ns_nop 1")
        e(f"v_add_f32 v{base}, v{base}, v{base+1}\nv_add_f32 v{base+2}, v{base+2}, v{base+3}\ns_nop 1")
        e(f"v_permlane32_swap_b32 v{base}, v{base+2}\ns_nop 1")
        e(f"v_add_f32 v{base}, v{base}, v{base+2}")
    sGB = sKV; sGF = sD
    FB = GB + 32
    e(f"s_mul_i32 s{sGF}, s{sFB}, 3072\ns_lshl_b32 s{sT}, s{sCB}, 6\ns_add_u32 s{sGF}, s{sGF}, s{sT}\ns_add_u32 s{sGF}, s{sGF}, {WS_FP}")
    e(f"v_and_b32 v2, 3, v{LANE}\nv_lshrrev_b32 v4, 4, v{LANE}\nv_min_u32 v4, 2, v4\nv_mul_u32_u24 v4, 192, v4\nv_add_u32 v2, v2, v4")
    e(f"s_mul_i32 s{sT}, s{sFB}, 576\ns_lshl_b32 s{sT2}, s{sCB}, 2\ns_add_u32 s{sT}, s{sT}, s{sT2}")
    e(f"v_add_u32 v2, s{sT}, v2\nv_lshlrev_b32 v6, 1, v2")
    e("global_load_ushort v7, v6, s[4:5]")
    e(f"s_mul_i32 s{sGB}, s{sFB}, {128*3072}\ns_lshl_b32 s{sT}, s{sCB}, 6\ns_add_u32 s{sGB}, s{sGB}, s{sT}\ns_add_u32 s{sGB}, s{sGB}, {WS_Y}")
    e(f"v_lshrrev_b32 v1, 2, v{LANE}\nv_mul_u32_u24 v4, 6144, v1\nv_mul_u32_u24 v1, 3072, v1\nv_and_b32 v2, 3, v{LANE}\nv_lshl_add_u32 v1, v2, 4, v1\nv_lshl_add_u32 v4, v2, 4, v4")
    e(f"v_not_b32 v2, v3")
    nfk = 0 if (noffn or dtest == 1) else 6
    groups = [(FB+4*k, 4, sGF, k*16*6144) for k in range(nfk)] + [(GB+4*k, 1, sGB, k*16*3072) for k in range(8)]
    for g, _, _, _ in groups: e(f"v_mov_b32 v{g+3}, v2")
    e("s_waitcnt vmcnt(0)\nv_lshlrev_b32 v7, 16, v7")
    def poll(groups, sleep, tagp):
        lp = e.label(tagp+"lp"); ok = e.label(tagp+"ok")
        e(f"{lp}:")
        e(f"s_mov_b64 s[{sEX}:{sEX+1}], 0")
        for g, va, sb, off in groups:
            sk = e.label(tagp+"sk")
            e(f"v_cmp_ne_u32 vcc, v3, v{g+3}\ns_add_u32 s{sT2}, s{sb}, {off}")
            e(f"s_or_b64 s[{sEX}:{sEX+1}], s[{sEX}:{sEX+1}], vcc\ns_mov_b64 exec, vcc\ns_cbranch_execz {sk}")
            e(f"buffer_load_dwordx4 {q(g)}, v{va}, s[{SWS}:{SWS+3}], s{sT2} offen sc1")
            e(f"{sk}:")
            e("s_mov_b64 exec, -1")
        e(f"s_cmp_eq_u64 s[{sEX}:{sEX+1}], 0\ns_cbranch_scc1 {ok}")
        e("s_waitcnt vmcnt(0)")
        e(f"s_add_u32 s{sSPIN}, s{sSPIN}, 1\ns_cmp_gt_u32 s{sSPIN}, {SPIN_MAX}\ns_cbranch_scc1 {ok}")
        if sleep: e(f"s_sleep {sleep}")
        e(f"s_branch {lp}")
        e(f"{ok}:")
    def issue(groups):
        for g, va, sb, off in groups:
            e(f"s_add_u32 s{sT2}, s{sb}, {off}\nbuffer_load_dwordx4 {q(g)}, v{va}, s[{SWS}:{SWS+3}], s{sT2} offen sc1")
    e("s_barrier")
    stamp(3)
    issue(groups[:nfk])
    e("s_barrier")
    stamp(4)
    if dbg: e("s_memrealtime s[68:69]")
    issue(groups[nfk:])
    if nfk:
        e("s_waitcnt vmcnt(8)")
        poll(groups[:nfk], 4, "f")
        reduce3(FB, nfk)
    bf16r(e, 5, FB)
    e("s_waitcnt vmcnt(0)")
    poll(groups[nfk:], y_sleep, "y")
    reduce3(GB, 8)
    bf16r(e, GB, GB)
    e(f"v_add_f32 v{GB}, v7, v{GB}")
    bf16r(e, GB, GB)
    e(f"v_add_f32 v{GB}, v{GB}, v5\nv_cvt_pk_bf16_f32 v{GB}, v{GB}, v{GB}")
    e("s_mov_b32 exec_lo, 0x000f000f\ns_mov_b32 exec_hi, 0x0000000f")
    e(f"global_store_short v6, v{GB}, s[22:23]")
    e("s_mov_b64 exec, -1")
    if stamps:
        stamp(5)
        stamp_store([(5, 5)], 0, 68)
        stamp_store([(1, 0), (2, 1), (3, 3), (4, 4)], 1, 68)
        e("s_mov_b64 exec, -1")
    e(f"s_cmp_lg_u32 s{sG}, 0\ns_cbranch_scc1 L_end")
    e(f"s_mov_b32 s{sGB}, {WS_Y + 128*3072}")
    gather(128, 3072, sGB, 2, "e", reduce=False)
    e(f"v_mov_b32 v2, {WS_EP}\ns_mov_b64 exec, 1")
    e(f"buffer_store_dword v3, v2, s[{SWS}:{SWS+3}], 0 offen sc1")
    if dbg:
        e("s_memrealtime s[70:71]\ns_waitcnt lgkmcnt(0)\ns_sub_u32 s66, s66, s64\ns_sub_u32 s68, s68, s64\ns_sub_u32 s70, s70, s64")
        e("v_mov_b32 v8, s66\nv_mov_b32 v9, s68\nv_mov_b32 v10, s70\nv_mov_b32 v11, s59\nv_mov_b32 v2, 0\nglobal_store_dwordx4 v2, v[8:11], s[24:25]")
    e("s_endpgm")
    e.vm = []
    e("L_down:")
    FM = [8, 9, 10, 11]; FX = 12; FY = 16; FH = [20, 24, 28, 32]; FD = 36; FT0 = 56; FT1 = 57; VWD = 58; PA = 59; PV = 60; FR0 = 72
    NFS = (168 - FR0)//4
    SWD = SW; SWD2 = SK; SP2 = SV
    srd(e, SWD, 20, 21, 0 if dtest == 2 else 4608*1152)
    e(f"s_cmp_eq_u32 s{sD}, 2\ns_cselect_b32 s{sT}, {0 if dtest == 2 else 4608*1152}, 0\ns_cselect_b32 s{sT2}, {WS_SIZE}, 0")
    e(f"s_cselect_b32 s{SWD2+2}, 0, {32*1152}\ns_sub_u32 s{SWD2}, s20, s{SWD2+2}\ns_subb_u32 s{SWD2+1}, s21, 0\ns_mov_b32 s{SWD2+2}, s{sT}\ns_mov_b32 s{SWD2+3}, 0x20000")
    e(f"s_mov_b32 s{SP2}, s26\ns_mov_b32 s{SP2+1}, s27\ns_mov_b32 s{SP2+2}, s{sT2}\ns_mov_b32 s{SP2+3}, 0x20000")
    e(f"v_lshrrev_b32 v{FT1}, 4, v{LANE}\nv_add_u32 v{FT1}, s{sF0}, v{FT1}\nv_mul_u32_u24 v{FT1}, 1152, v{FT1}\nv_and_b32 v{FT0}, 15, v{LANE}\nv_lshl_add_u32 v{VWD}, v{FT0}, 4, v{FT1}")
    dn = [0]; dorder = []
    def wd_issue():
        n = dn[0]
        if n >= 80: return
        dn[0] += 1
        rg, t = n//5, n % 5
        if len(dorder) >= WD and dorder[-WD] in e.vm: e.wait(dorder[-WD])
        s = SWD if rg < 8 else SWD2
        e(f"s_mov_b32 s{sT2}, {rg*4608}")
        e.vmem(f"buffer_load_dwordx4 {q(FR0+4*(n%NFS))}, v{VWD}, s[{s}:{s+3}], s{sT2} offen offset:{256*t}{df}", f"d{n}")
        dorder.append(f"d{n}")
    e(f"s_lshr_b32 s{sT}, s{sF0}, 7\ns_lshl_b32 s{sT}, s{sT}, 12")
    e(f"v_lshrrev_b32 v{PA}, 5, v{LANE}\nv_lshlrev_b32 v{PA}, 10, v{PA}\nv_and_b32 v{FT1}, 31, v{LANE}\nv_lshl_add_u32 v{PA}, v{FT1}, 3, v{PA}")
    e(f"s_and_b32 s{sT2}, s{sF0}, 127\ns_lshl_b32 s{sT2}, s{sT2}, 3\ns_add_u32 s{sT}, s{sT}, s{sT2}\ns_add_u32 s{sT}, s{sT}, {WS_P0 + 64*2048}")
    e(f"v_add_u32 v{PA}, s{sT}, v{PA}")
    masks(e, FM, LANE, FX, FX+1)
    e(f"s_mov_b32 s{sT}, {72*2048}\ns_cmp_eq_u32 s{sD}, 2\ns_cselect_b32 s{sTAG2}, s{sTAG}, 0")
    PG = FD
    ld = []; ck = []
    for hb in range(2):
        s_ = SWS if hb == 0 else SP2
        for k, (so, of) in enumerate((("0", 0), ("0", 2048), (f"s{sT}", 0), (f"s{sT}", 2048))):
            r = PG + 8*hb + 2*k
            ld.append(f"buffer_load_dwordx2 {d2(r)}, v{PA}, s[{s_}:{s_+3}], {so} offen offset:{of+256*hb} sc1")
            ck.append(f"v_xor_b32 v{FX+(k if hb == 0 else 4+k)}, s{sTAG if hb == 0 else sTAG2}, v{r+1}")
    ck.append(f"v_or3_b32 v{FX}, v{FX}, v{FX+1}, v{FX+2}\nv_or3_b32 v{FX}, v{FX}, v{FX+3}, v{FX+4}\nv_or3_b32 v{FX}, v{FX}, v{FX+5}, v{FX+6}\nv_or_b32 v{FX}, v{FX}, v{FX+7}\nv_cmp_ne_u32 vcc, 0, v{FX}")
    spin("\n".join(ld), "\n".join(ck), 8, "d")
    for hb in range(2):
        for k in range(4): e(f"v_mov_b32 v{PV+4*hb+k}, v{PG+8*hb+2*k}")
    for _ in range(WD): wd_issue()
    e(f"v_lshrrev_b32 v{FT0}, 5, v{LANE}\nv_lshlrev_b32 v{FT0}, 7, v{FT0}\nv_and_b32 v{FT1}, 3, v{LANE}\nv_lshl_add_u32 v{FT0}, v{FT1}, 5, v{FT0}")
    e(f"v_bfe_u32 v{FT1}, v{LANE}, 2, 3\nv_lshl_add_u32 v{FT0}, v{FT1}, 2, v{FT0}")
    for r in range(20): e(f"v_mov_b32 v{FD+r}, 0")
    K1 = f32(0.044715); K2 = f32(-2.0*0.7978845608028654*LOG2E)
    e(f"s_mov_b32 s{sT}, {hx(K1)}")
    for hb in range(2):
        g = PV+4*hb; u = g+2; a = g+1
        e(f"v_add_f32 v{g}, v{g}, v{g+1}\nv_add_f32 v{u}, v{u}, v{u+1}")
        bf16r(e, g, g); bf16r(e, u, u)
        e(f"v_mul_f32 v{a}, v{g}, v{g}\nv_fma_f32 v{a}, v{a}, s{sT}, 1.0\nv_mul_f32 v{a}, v{a}, v{g}\nv_mul_f32 v{a}, {hx(K2)}, v{a}")
        e(f"v_exp_f32 v{a}, v{a}\ns_nop 0\nv_add_f32 v{a}, 1.0, v{a}\nv_rcp_f32 v{a}, v{a}\ns_nop 0\nv_mul_f32 v{a}, v{a}, v{g}")
        bf16r(e, a, a)
        e(f"v_mul_f32 v{a}, v{a}, v{u}\nv_cvt_pk_bf16_f32 v{a}, v{a}, v{a}")
        e(f"ds_write_b32 v{FT0}, v{a} offset:{L_H+256*hb}")
    e(f"v_bfe_u32 v{FT0}, v{LANE}, 3, 1\nv_lshlrev_b32 v{FT0}, 7, v{FT0}\nv_lshrrev_b32 v{FT1}, 4, v{LANE}\nv_lshl_add_u32 v{FT0}, v{FT1}, 5, v{FT0}")
    e("s_waitcnt lgkmcnt(0)")
    for j in range(4): e(f"ds_read_b128 {q(FH[j])}, v{FT0} offset:{L_H+256*(j//2)+16*(j%2)}")
    stamp(3)
    e("s_waitcnt lgkmcnt(0)")
    for n in range(80):
        rg, t = n//5, n % 5
        D = FX if rg % 2 == 0 else FY
        if t == 0:
            for w in range(4): e(f"v_and_b32 v{D+w}, v{FH[rg//4] + rg%4}, v{FM[w]}")
            e("s_nop 0")
        wd_issue()
        if f"d{n}" in e.vm: e.wait(f"d{n}")
        e(f"v_mfma_f32_16x16x32_bf16 {q(FD+4*t)}, {q(D)}, {q(FR0+4*(n%NFS))}, {q(FD+4*t)}")
    e(f"v_and_b32 v{FT0}, 15, v{LANE}\nv_lshlrev_b32 v{FT0}, 5, v{FT0}\nv_and_b32 v{FT1}, 16, v{LANE}\nv_add_u32 v{FT0}, v{FT0}, v{FT1}")
    e(f"v_lshrrev_b32 v{FT1}, 5, v{LANE}\nv_mul_u32_u24 v{FT1}, 2560, v{FT1}\nv_add_u32 v{FT0}, v{FT0}, v{FT1}")
    e(f"s_mul_i32 s{sT}, s{sFP}, 6144\ns_add_u32 s{sT}, s{sT}, {WS_FP}")
    e(f"v_lshlrev_b32 v{FT1}, 2, v{LANE}\nv_lshlrev_b32 v{VWD}, 4, v{LANE}\ns_add_u32 s{sT2}, s{sT}, 3072")
    e("s_nop 1")
    for t in range(5): e(f"ds_write_b128 v{FT0}, {q(FD+4*t)} offset:{L_FD+512*t}")
    e("s_waitcnt lgkmcnt(0)")
    for b in range(2):
        for k in range(3):
            g = FR0 + 4*(3*b+k)
            for r in range(3): e(f"ds_read_b32 v{g+r}, v{FT1} offset:{L_FD+2560*b+256*k+768*r}")
            e(f"v_mov_b32 v{g+3}, s{sTAG}")
        e("s_waitcnt lgkmcnt(0)")
        for k in range(3):
            g = FR0 + 4*(3*b+k)
            if dtest != 1: e(f"buffer_store_dwordx4 {q(g)}, v{VWD}, s[{SWS}:{SWS+3}], s{sT if b == 0 else sT2} offen offset:{1024*k} sc1")
    if stamps:
        stamp(4)
        stamp_store([(1, 0), (2, 1), (3, 5), (4, 6)], 1, 12)
    e("s_waitcnt vmcnt(0)")
    e("L_end:")
    e("s_endpgm")
    e.o.append(f'.section .rodata,"a"\n.p2align 6\n.amdhsa_kernel {KN}')
    e.o.append("  .amdhsa_next_free_vgpr 168\n  .amdhsa_next_free_sgpr 90\n  .amdhsa_accum_offset 168")
    e.o.append("  .amdhsa_group_segment_fixed_size 0\n  .amdhsa_kernarg_size 96\n  .amdhsa_user_sgpr_count 2\n  .amdhsa_user_sgpr_kernarg_segment_ptr 1\n  .amdhsa_system_sgpr_workgroup_id_x 1\n  .amdhsa_float_denorm_mode_32 3\n.end_amdhsa_kernel")
    open(name, "w").write("\n".join(e.o) + "\n")

if __name__ == "__main__":
    base = dict(wratio=9, BURST=10, wo_paced=False, W=3)
    gen("parallel_sum__mha_block_cached__geglu_ffn__decode.s", wf="", of="", df="", **base)
    gen("h_a.s", dbg=True, **base)
    gen("h_e.s", dbg=True, wf="", of="", df="", **base)
    base["W"] = 4
    gen("h_b.s", dbg=True, wf="", of="", df="", **base)
    base["W"] = 6
    gen("h_c.s", dbg=True, wf="", of="", df="", aux_prio=3, **base)
```

```python
import struct, sys
from gen import (KN, f32, hx, HEADER, E, q, d2, DPPF, allreduce, bf16r, ln_norm, masks, srd, LOG2E, SCALE, SPIN_MAX)

WS_Y   = 0x100000
WS_MLW = 0x290000
WS_P0  = 0x2A0000
WS_EP  = 0x330040
WS_SIZE = 0x340000
L_XT = 0; L_QP = 4096; L_QF = 12288; L_H = 12800; L_SY = 13056; L_ML = 13120; L_YP = 13312; L_END = L_YP + 9*5120

class Pool:
    def __init__(s, quads): s.free = list(quads)
    def get(s): return s.free.pop(0)
    def put(s, r): s.free.append(r)

def gen(name, W=3, PRE=26, stamps=False, wo_gap=2, catch=2, aux_prio=3, mlr_at=8, coef_at=13, q_sleep=2, BURST=10,
        y_sleep=0, kf=' nt', vf=' nt', wf='', of='', df='', wd_at=1, ffn_at=5, kfill=True, dbg=False, ysl=(), nocomp=False, nowo=False, noq=False, boost=None, boost_at=1, WEND=3, wend_from=116, nowd=False, nounit=False, ml_sleep=32, WI=3, wi_until=0, prio_hi=False, kfirst=0):
    e = E()
    e.o.append(HEADER.rstrip("\n"))
    e.o.append(f"; @launch grid=(256,1,1) block=(576,1,1) lds={L_END}")
    e.o.append('.amdgcn_target "amdgcn-amd-amdhsa--gfx950"\n.text')
    e.o.append(f".globl {KN}\n.p2align 8\n.type {KN},@function\n{KN}:")
    SK, SV, SW, SX, SWS, SWO = 28, 32, 36, 40, 44, 48
    sH, sB, sS, sBH, sT, sKV, sT2, sSPIN, sROW, sSTR = 52, 53, 54, 55, 56, 57, 58, 59, 60, 61
    sEX = 62; sST = 64; sU = 84; sU2 = 85; sU3 = 86; sTAG = 87; sF0 = 88
    def stamp(i):
        if stamps: e(f"s_memrealtime s[{sST+2*i}:{sST+2*i+1}]")
    def stamp_store(idx_list, region, vt):
        e(f"s_waitcnt lgkmcnt(0)\ns_mov_b64 exec, 1\ns_lshl_b32 s{sT}, s2, 6\ns_add_u32 s{sT}, s{sT}, {16384*region}\nv_mov_b32 v{vt}, s{sT}")
        for i, pos in idx_list:
            e(f"v_mov_b32 v{vt+2}, s{sST+2*i}\nv_mov_b32 v{vt+3}, s{sST+2*i+1}")
            e(f"buffer_store_dwordx2 {d2(vt+2)}, v{vt}, s[{SWS}:{SWS+3}], 0 offen offset:{8*pos}\ns_nop 1")
    def lds_wait(vd, vz, off, cmp, sleep, tag):
        lp = e.label(tag+"w"); ok = e.label(tag+"ok")
        e(f"{lp}:")
        e(f"ds_read_b32 v{vd}, v{vz} offset:{off}\ns_waitcnt lgkmcnt(0)\n{cmp}\ns_cbranch_vccz {ok}")
        e(f"s_add_u32 s{sSPIN}, s{sSPIN}, 1\ns_cmp_gt_u32 s{sSPIN}, {SPIN_MAX*20}\ns_cbranch_scc1 {ok}\ns_sleep {sleep}\ns_branch {lp}")
        e(f"{ok}:")
        e(f"s_mov_b32 s{sSPIN}, 0")
    e("s_cmp_ge_u32 s2, 256\ns_cbranch_scc1 L_end")
    stamp(0)
    if dbg: e("s_memrealtime s[64:65]")
    e("s_load_dwordx16 s[4:19], s[0:1], 0\ns_load_dwordx8 s[20:27], s[0:1], 64")
    e("v_lshrrev_b32 v1, 6, v0\nv_and_b32 v0, 63, v0")
    e(f"s_and_b32 s{sH}, s2, 31")
    e("v_readfirstlane_b32 s3, v1")
    e(f"s_bfe_u32 s{sB}, s2, 0x10005\ns_lshr_b32 s{sS}, s2, 6")
    e(f"s_lshl_b32 s{sBH}, s{sB}, 5\ns_add_u32 s{sBH}, s{sBH}, s{sH}")
    e(f"s_lshl_b32 s{sROW}, s{sBH}, 2\ns_add_u32 s{sROW}, s{sROW}, s{sS}")
    e(f"s_mov_b32 s{sSPIN}, 0\ns_lshr_b32 s{sU}, s2, 1")
    e(f"s_and_b32 s{sF0}, s{sROW}, 127\ns_mul_i32 s{sF0}, s{sF0}, 36")
    e("s_waitcnt lgkmcnt(0)")
    srd(e, SWS, 26, 27, WS_SIZE)
    e("s_cmp_eq_u32 s3, 8\ns_cbranch_scc1 L_aux")

    LANE = 0; VKV = 1; M = [2, 3, 4, 5]; QF = 6; T0 = 10; T1 = 11
    ACC = 12; X = 16; Y = 20; S0 = 24; MX = 164; LS = 165; VO = 166; FL = 167
    pool = Pool(range(40, 164, 4))
    e(f"s_min_u32 s{sU}, s{sU}, 103")
    e(f"s_cmp_lt_u32 s{sU}, 68\ns_cselect_b64 s[{SW}:{SW+1}], s[16:17], s[18:19]\ns_cselect_b32 s{sT}, 32, 68")
    e(f"s_cmp_lt_u32 s{sU}, 32\ns_cselect_b64 s[{SW}:{SW+1}], s[10:11], s[{SW}:{SW+1}]\ns_cselect_b32 s{sT}, 0, s{sT}")
    e(f"s_cselect_b32 s{sSTR}, 8, 9\ns_lshl_b32 s{sSTR}, s{sSTR}, 10\ns_mul_i32 s{SW+2}, s{sSTR}, 576")
    e(f"s_cmp_lt_u32 s2, {0 if nounit else 208}\ns_cselect_b32 s{SW+2}, s{SW+2}, 0\ns_mov_b32 s{SW+3}, 0x20000")
    e(f"s_sub_u32 s{sT}, s{sU}, s{sT}\ns_lshl_b32 s{sT}, s{sT}, 8")
    e(f"s_and_b32 s{sU2}, s2, 1\ns_mul_i32 s{sU2}, s{sU2}, 288\ns_mul_i32 s{sT2}, s3, 36\ns_add_u32 s{sU2}, s{sU2}, s{sT2}")
    sWO = sU3
    e(f"s_mul_i32 s{sT2}, s{sU2}, s{sSTR}\ns_add_u32 s{sWO}, s{sT}, s{sT2}")
    srd(e, SX, 4, 5, 2304)
    xq = [pool.free.pop() for _ in range(8)]
    XA = [xq[0]+i for i in range(4)] + [xq[1]+i for i in range(4)] + [xq[2]]; XO = xq[2]+1
    TMP = [xq[2]+2, xq[2]+3] + [xq[k]+i for k in range(3, 7) for i in range(4)]
    e(f"v_mul_u32_u24 v{T0}, 36, v{LANE}")
    e.vmem(f"buffer_load_dwordx4 {q(xq[0])}, v{T0}, s[{SX}:{SX+3}], 0 offen", "x")
    e.vmem(f"buffer_load_dwordx4 {q(xq[1])}, v{T0}, s[{SX}:{SX+3}], 0 offen offset:16", "x")
    e.vmem(f"buffer_load_dword v{xq[2]}, v{T0}, s[{SX}:{SX+3}], 0 offen offset:32", "x")
    e(f"v_lshrrev_b32 v{T0}, 5, v{LANE}\nv_mul_u32_u24 v{T0}, 1152, v{T0}\nv_and_b32 v{T1}, 31, v{LANE}\nv_lshl_add_u32 v{T0}, v{T1}, 2, v{T0}")
    e(f"s_lshl_b32 s{sT2}, s{sU2}, 1\nv_add_u32 v{T1}, s{sT2}, v{T0}")
    e.vmem(f"buffer_load_dword v{XO}, v{T1}, s[{SX}:{SX+3}], 0 offen", "x")
    e(f"v_lshrrev_b32 v{VO}, 4, v{LANE}\nv_mul_lo_u32 v{VO}, v{VO}, s{sSTR}\nv_and_b32 v{FL}, 15, v{LANE}\nv_lshl_add_u32 v{VO}, v{FL}, 4, v{VO}")
    e(f"s_lshl_b32 s{sSTR}, s{sSTR}, 2")
    WQ = [pool.free.pop() for _ in range(9)]
    for n in range(9):
        e.vmem(f"buffer_load_dwordx4 {q(WQ[n])}, v{VO}, s[{SW}:{SW+3}], s{sWO} offen{wf}", f"w{n}")
        if n < 8: e(f"s_add_u32 s{sWO}, s{sWO}, s{sSTR}")
    srd(e, SK, 6, 7, 0x8000000)
    e(f"v_lshlrev_b32 v{VKV}, 4, v{LANE}")
    e(f"s_lshl_b32 s{sKV}, s{sBH}, 21\ns_lshl_b32 s{sT}, s{sS}, 19\ns_add_u32 s{sKV}, s{sKV}, s{sT}\ns_lshl_b32 s{sT}, s3, 12\ns_add_u32 s{sKV}, s{sKV}, s{sT}")
    slot = {}; order = []; kvn = [0]; won = [0]; WO = {}; WD = {}
    def pace():
        w_ = WEND if kvn[0] > wend_from else (WI if kvn[0] <= wi_until else W)
        if len(order) >= w_:
            tg = order[-w_]
            if tg in e.vm: e.wait(tg)
    def kv_issue(paced=True):
        n = kvn[0]
        if n >= 128: return False
        if n >= 4 and not pool.free: return False
        kvn[0] += 1
        slot[n] = S0 + 4*n if n < 4 else pool.get()
        if paced: pace()
        t, i = (n % 64)//4, n % 4
        s = SK if n < 64 else SV
        e(f"s_add_u32 s{sT2}, s{sKV}, {t*32768}")
        e.vmem(f"buffer_load_dwordx4 {q(slot[n])}, v{VKV}, s[{s}:{s+3}], s{sT2} offen offset:{1024*i}{kf if n < 64 else vf}", f"kv{n}")
        order.append(f"kv{n}")
        return True
    def wo_issue():
        n = won[0]
        if n >= 20 or len(pool.free) < 5: return False
        won[0] += 1
        rg, t = n//5, n % 5
        WO[n] = pool.get()
        if nowo: return True
        e(f"s_movk_i32 s{sT2}, {rg*4608}")
        e.vmem(f"buffer_load_dwordx4 {q(WO[n])}, v{FL}, s[{SWO}:{SWO+3}], s{sT2} offen offset:{t*256}{of}", f"wo{n}")
        return True
    for _ in range(BURST - 9): kv_issue(paced=False)
    e("s_barrier")
    if prio_hi:
        lb = e.label("pr")
        e(f"s_cmp_lt_u32 s3, 4\ns_cbranch_scc1 {lb}\ns_setprio 1")
        e(f"{lb}:")
    srd(e, SV, 8, 9, 0x8000000); srd(e, SWO, 12, 13, 4096*1152)
    masks(e, M, LANE, T0, T1)
    MEAN, SD, RINV = ACC, ACC+1, ACC+2
    e.wait("x")
    for k in range(9):
        e(f"v_lshlrev_b32 v{TMP[2*k]}, 16, v{XA[k]}\nv_and_b32 v{TMP[2*k+1]}, 0xffff0000, v{XA[k]}")
    e(f"v_add_f32 v{MEAN}, v{TMP[0]}, v{TMP[1]}\nv_add_f32 v{SD}, v{TMP[2]}, v{TMP[3]}")
    for k in range(4, 18, 2): e(f"v_add_f32 v{MEAN}, v{MEAN}, v{TMP[k]}\nv_add_f32 v{SD}, v{SD}, v{TMP[k+1]}")
    e(f"v_add_f32 v{MEAN}, v{MEAN}, v{SD}")
    allreduce(e, "add", MEAN, T0, x32=False)
    e(f"v_mul_f32 v{MEAN}, {hx(f32(1.0/576))}, v{MEAN}")
    for k in range(18): e(f"v_sub_f32 v{TMP[k]}, v{TMP[k]}, v{MEAN}")
    e(f"v_mul_f32 v{SD}, v{TMP[0]}, v{TMP[0]}\nv_mul_f32 v{RINV}, v{TMP[1]}, v{TMP[1]}")
    for k in range(2, 18, 2): e(f"v_fmac_f32 v{SD}, v{TMP[k]}, v{TMP[k]}\nv_fmac_f32 v{RINV}, v{TMP[k+1]}, v{TMP[k+1]}")
    e(f"v_add_f32 v{SD}, v{SD}, v{RINV}")
    allreduce(e, "add", SD, T0, x32=False)
    e(f"v_mul_f32 v{SD}, {hx(f32(1.0/576))}, v{SD}")
    bf16r(e, SD, SD)
    e(f"v_add_f32 v{SD}, {hx(f32(1e-5))}, v{SD}")
    bf16r(e, SD, SD)
    e(f"v_sqrt_f32 v{SD}, v{SD}\ns_nop 0")
    bf16r(e, SD, SD)
    e(f"v_rcp_f32 v{RINV}, v{SD}")
    bf16r(e, MEAN, MEAN)
    e(f"v_lshlrev_b32 v{X}, 16, v{XO}\nv_and_b32 v{X+1}, 0xffff0000, v{XO}")
    ln_norm(e, X+2, X, MEAN, SD, RINV, T0, T1)
    ln_norm(e, X+3, X+1, MEAN, SD, RINV, T0, T1)
    e(f"s_lshl_b32 s{sT}, s3, 9")
    e(f"v_lshrrev_b32 v{T0}, 5, v{LANE}\nv_lshlrev_b32 v{T0}, 8, v{T0}\nv_and_b32 v{T1}, 1, v{LANE}\nv_lshl_add_u32 v{T0}, v{T1}, 7, v{T0}")
    e(f"v_bfe_u32 v{T1}, v{LANE}, 1, 4\nv_lshl_add_u32 v{T0}, v{T1}, 2, v{T0}\nv_add_u32 v{T0}, s{sT}, v{T0}")
    e(f"ds_write_b32 v{T0}, v{X+2} offset:{L_XT}\nds_write_b32 v{T0}, v{X+3} offset:{L_XT+64}")
    e(f"v_bfe_u32 v{T0}, v{LANE}, 3, 1\nv_lshlrev_b32 v{T0}, 8, v{T0}\nv_lshrrev_b32 v{T1}, 4, v{LANE}\nv_lshl_add_u32 v{T0}, v{T1}, 6, v{T0}\nv_add_u32 v{T0}, s{sT}, v{T0}")
    e("s_waitcnt lgkmcnt(0)")
    X2 = [xq[3]+i for i in range(4)] + [xq[4]+i for i in range(4)] + [xq[5]]
    e(f"ds_read_b128 {q(xq[3])}, v{T0} offset:{L_XT}\nds_read_b128 {q(xq[4])}, v{T0} offset:{L_XT+16}\nds_read_b32 v{xq[5]}, v{T0} offset:{L_XT+32}")
    for r in range(4): e(f"v_mov_b32 v{ACC+r}, 0")
    e(f"v_and_b32 v{VO}, 15, v{LANE}\nv_lshlrev_b32 v{VO}, 5, v{VO}\nv_and_b32 v{T1}, 16, v{LANE}\nv_add_u32 v{VO}, v{VO}, v{T1}")
    e(f"v_lshrrev_b32 v{T1}, 5, v{LANE}\nv_lshl_add_u32 v{T0}, v{T1}, 9, v{VO}\ns_lshl_b32 s{sT}, s3, 10\nv_add_u32 v{T0}, s{sT}, v{T0}")
    e(f"v_mul_u32_u24 v{T1}, 2560, v{T1}\nv_add_u32 v{VO}, v{VO}, v{T1}")
    for r in (xq[0], xq[1], xq[2], xq[6], xq[7]): pool.put(r)
    e("s_waitcnt lgkmcnt(0)")
    for n in range(9):
        D = X if n % 2 == 0 else Y
        for w in range(4): e(f"v_and_b32 v{D+w}, v{X2[n]}, v{M[w]}")
        if f"w{n}" in e.vm: e.wait(f"w{n}")
        else: e("s_nop 0")
        e("s_nop 0")
        e(f"v_mfma_f32_16x16x32_bf16 {q(ACC)}, {q(D)}, {q(WQ[n])}, {q(ACC)}")
        if kfill: kv_issue(paced=False)
        pool.put(WQ[n])
    for r in (xq[3], xq[4], xq[5]): pool.put(r)
    e(f"v_mov_b32 v{T1}, 1\nv_mov_b32 v{X}, 0")
    e("s_nop 5")
    e(f"ds_write_b128 v{T0}, {q(ACC)} offset:{L_QP}")
    e(f"s_waitcnt lgkmcnt(0)\ns_mov_b64 exec, 1\nds_add_u32 v{X}, v{T1} offset:{L_SY}\ns_mov_b64 exec, -1")
    stamp(5)
    e(f"v_lshrrev_b32 v{T1}, 4, v{LANE}\nv_mul_u32_u24 v{T1}, 1152, v{T1}\nv_and_b32 v{T0}, 15, v{LANE}\nv_lshlrev_b32 v{T0}, 4, v{T0}\nv_add_u32 v{LS}, v{T1}, v{T0}")
    e(f"s_lshl_b32 s{sT}, s{sH}, 7\ns_lshl_b32 s{sT2}, s3, 4\ns_add_u32 s{sT}, s{sT}, s{sT2}\ns_mul_i32 s{sT}, s{sT}, 1152\nv_add_u32 v{FL}, s{sT}, v{LS}")
    SWD = SW
    srd(e, SWD, 20, 21, 0 if nowd else 4608*1152)
    sWD = sU3
    e(f"s_lshl_b32 s{sT}, s3, 2\ns_add_u32 s{sT}, s{sT}, s{sF0}\ns_mul_i32 s{sWD}, s{sT}, 1152\ns_sub_u32 s{sWD}, s{sWD}, 0")
    e(f"v_readfirstlane_b32 s{sU}, v{FL}")
    e(f"v_mov_b32 v{MX}, 0xff800000")
    while kvn[0] < PRE: assert kv_issue()
    lds_wait(T1, X, L_SY+4, f"v_cmp_eq_u32 vcc, 0, v{T1}", 2, "q")
    e(f"ds_read_b128 {q(QF)}, v{T0} offset:{L_QF}\nds_read_b32 v{T1}, v{X} offset:{L_QF+256}")
    stamp(2)
    e("s_waitcnt lgkmcnt(0)")
    e(f"v_readfirstlane_b32 s{sTAG}, v{T1}")
    def ctile(t):
        if f"kv{4*t+3}" in e.vm: e.wait(f"kv{4*t+3}")
        for j in range(4):
            for i in range(4):
                if nocomp: continue
                r = slot[4*t+i] + j
                if j == 0: e(f"v_dot2_f32_bf16 v{X+i}, v{r}, v{QF}, 0")
                else: e(f"v_dot2c_f32_bf16 v{X+i}, v{r}, v{QF+j}")
        if t > 0:
            for i in range(4): pool.put(slot[4*t+i])
        if nocomp: return
        e("s_nop 2")
        e(f"v_add_f32_dpp v{X}, v{X}, v{X} row_ror:8 row_mask:0xf bank_mask:0x3")
        e(f"v_add_f32_dpp v{X}, v{X+2}, v{X+2} row_ror:8 row_mask:0xf bank_mask:0xc")
        e(f"v_add_f32_dpp v{X+1}, v{X+1}, v{X+1} row_ror:8 row_mask:0xf bank_mask:0x3")
        e(f"v_add_f32_dpp v{X+1}, v{X+3}, v{X+3} row_ror:8 row_mask:0xf bank_mask:0xc")
        e("s_nop 0")
        e(f"v_add_f32_dpp v{X}, v{X}, v{X} row_shl:4 row_mask:0xf bank_mask:0x5")
        e("s_nop 0")
        e(f"v_add_f32_dpp v{X}, v{X+1}, v{X+1} row_shr:4 row_mask:0xf bank_mask:0xa")
        e("s_nop 1")
        e(f"v_add_f32_dpp v{X}, v{X}, v{X} quad_perm:[1,0,3,2] {DPPF}")
        e("s_nop 1")
        e(f"v_add_f32_dpp v{X}, v{X}, v{X} quad_perm:[2,3,0,1] {DPPF}")
        bf16r(e, X, X)
        e(f"v_mul_f32 v{X}, {hx(f32(SCALE))}, v{X}")
        bf16r(e, S0+t, X)
        e(f"v_max_f32 v{MX}, v{MX}, v{S0+t}")
    t = 0; since_wo = 0
    while t < 16:
        lag = kvn[0] - 4*t
        if lag >= 4 + W + 4*(catch-1) + 4:
            for _ in range(catch):
                if t < 16: ctile(t); t += 1
            kv_issue()
        elif lag >= 4 + W:
            ctile(t); t += 1
        else:
            kv_issue(); since_wo += 1
            if since_wo >= wo_gap and wo_issue(): since_wo = 0
    while won[0] < 20: assert wo_issue()
    stamp(3)
    allreduce(e, "max", MX, T0, rors=(8, 4))
    e(f"v_mul_f32 v{MX}, {hx(f32(LOG2E))}, v{MX}\ns_mov_b32 s{sT}, {hx(f32(LOG2E))}\nv_mov_b32 v{LS}, 0")
    for t in range(8): e(f"v_fma_f32 v{S0+t}, v{S0+t}, s{sT}, -v{MX}")
    for t in range(8): e(f"v_exp_f32 v{S0+t}, v{S0+t}")
    kv_issue()
    for t in range(8, 16): e(f"v_fma_f32 v{S0+t}, v{S0+t}, s{sT}, -v{MX}")
    for t in range(8, 16): e(f"v_exp_f32 v{S0+t}, v{S0+t}")
    kv_issue()
    for t in range(16):
        e(f"v_add_f32 v{LS}, v{LS}, v{S0+t}\nv_cvt_pk_bf16_f32 v{S0+t}, v{S0+t}, v{S0+t}")
    allreduce(e, "add", LS, T0, rors=(8, 4))
    e(f"s_lshl_b32 s{sT}, s3, 3\nv_mov_b32 v{T0}, s{sT}\nv_mov_b32 v{T1}, 1\nv_mov_b32 v{QF}, 0\ns_mov_b64 exec, 1")
    e(f"ds_write_b64 v{T0}, {d2(MX)} offset:{L_ML}\nds_add_u32 v{QF}, v{T1} offset:{L_SY+12}\ns_mov_b64 exec, -1")
    e(f"v_subrev_u32 v{FL}, s{sU}, v{FL}")
    for r in range(4): e(f"v_mov_b32 v{ACC+r}, 0")
    MLR = QF
    yacc = {}
    def diag(dst, n):
        t, i = (n-64)//4, n % 4
        for w in range(4): e(f"v_and_b32_dpp v{dst+w}, v{S0+t}, v{M[w]} row_newbcast:{4*i} {DPPF}")
    diag(X, 64)
    wdn = 0
    for n in range(64, 128):
        cur = X if n % 2 == 0 else Y; nxt = Y if n % 2 == 0 else X
        if not boost:
            while kvn[0] < min(128, n + (WEND if n + W + 1 > wend_from else W) + 1):
                if not kv_issue(): break
        else:
            while kvn[0] < min(128, n + W + 2):
                m_ = kvn[0]
                if f"kv{m_-W-1}" in e.vm: e.wait(f"kv{m_-W-1}")
                if f"kv{m_-W}" in e.vm:
                    sk = e.label("bs")
                    idx = max(i for i, x in enumerate(e.vm) if x == f"kv{m_-W}")
                    e(f"s_cbranch_vccnz {sk}\ns_waitcnt vmcnt({len(e.vm)-1-idx})")
                    e(f"{sk}:")
                assert kv_issue(paced=False)
            if n % 4 == 0 and n >= 64 + 4*boost_at:
                if n == 64 + 4*boost_at:
                    e(f"v_mov_b32 v{QF}, 0\nds_read_b32 v{QF}, v{QF} offset:{L_SY+16}\ns_waitcnt lgkmcnt(0)\nv_readfirstlane_b32 s{sU2}, v{QF}")
                else:
                    e(f"s_sub_u32 s{sU2}, s{sU2}, 1")
                e(f"s_cmp_gt_i32 s{sU2}, 0\ns_cselect_b64 vcc, -1, 0")
        if n >= 64 + 4*wd_at and wdn < 5 and n % 2 == 0:
            WD[wdn] = pool.get()
            e.vmem(f"buffer_load_dwordx4 {q(WD[wdn])}, v{FL}, s[{SWD}:{SWD+3}], s{sWD} offen offset:{256*wdn}{df}", f"wd{wdn}")
            wdn += 1
        if n + 1 < 128 and n != 64 + 4*ffn_at: diag(nxt, n+1)
        else: e("s_nop 1")
        if f"kv{n}" in e.vm: e.wait(f"kv{n}")
        e(f"v_mfma_f32_16x16x32_bf16 {q(ACC)}, {q(cur)}, {q(slot[n])}, {q(ACC)}")
        pool.put(slot[n])
        if (n - 64) % 16 == 15 and n < 127 - 15: pool.put(S0 + 4*((n-64)//16))
        if n == 64 + 4*ffn_at:
            assert wdn == 5
            e(f"v_mov_b32 v{QF}, 0")
            lds_wait(T1, QF, L_SY+8, f"v_cmp_eq_u32 vcc, 0, v{T1}", 2, "h")
            e(f"v_lshrrev_b32 v{T1}, 4, v{LANE}\nv_lshlrev_b32 v{T1}, 2, v{T1}\ns_lshl_b32 s{sT}, s3, 4\nv_add_u32 v{T1}, s{sT}, v{T1}")
            e(f"ds_read_b32 v{T1}, v{T1} offset:{L_H}")
            e(f"v_and_b32 v{QF}, 8, v{LANE}\nv_cmp_ne_u32 vcc, 0, v{QF}\ns_waitcnt lgkmcnt(0)\ns_nop 0\nv_cndmask_b32 v{T1}, 0, v{T1}, vcc")
            for w in range(4): e(f"v_and_b32 v{nxt+w}, v{T1}, v{M[w]}")
            if "wd4" in e.vm: e.wait("wd4")
            e("s_nop 1")
            for t in range(5):
                yacc[t] = pool.get()
                e(f"v_mfma_f32_16x16x32_bf16 {q(yacc[t])}, {q(nxt)}, {q(WD[t])}, 0")
                pool.put(WD[t])
            diag(nxt, n+1)
            e("s_nop 1")
            if boost: e(f"s_cmp_gt_i32 s{sU2}, 0\ns_cselect_b64 vcc, -1, 0")
        if n == 64 + 4*coef_at:
            e(f"v_mov_b32 v{QF}, 0")
            lds_wait(T1, QF, L_SY+16, f"v_cmp_eq_u32 vcc, 0, v{T1}", 4, "c")
            e(f"s_lshl_b32 s{sT}, s3, 2\nv_mov_b32 v{T1}, s{sT}\nds_read_b32 v{MX}, v{T1} offset:{L_ML+64}")
            e(f"v_bfe_u32 v{T0}, v{LANE}, 1, 3\nv_lshlrev_b32 v{T0}, 6, v{T0}\nv_and_b32 v{T1}, 1, v{LANE}\nv_lshl_add_u32 v{T0}, v{T1}, 3, v{T0}")
            e(f"v_bfe_u32 v{T1}, v{LANE}, 4, 1\nv_lshl_add_u32 v{T0}, v{T1}, 2, v{T0}\ns_lshl_b32 s{sT}, s3, 9\nv_add_u32 v{T0}, s{sT}, v{T0}")
            e(f"v_lshrrev_b32 v{T1}, 4, v{LANE}\nv_lshlrev_b32 v{T1}, 4, v{T1}\ns_lshl_b32 s{sT}, s3, 6\nv_add_u32 v{T1}, s{sT}, v{T1}")
            e(f"v_and_b32 v{LS}, 8, v{LANE}\nv_cmp_eq_u32 vcc, 0, v{LS}\ns_mul_i32 s{sT}, s3, 5120\nv_add_u32 v{VO}, s{sT}, v{VO}")
            for w in range(4): e(f"v_cndmask_b32 v{QF+w}, 0, v{M[w]}, vcc")
            e(f"v_cmp_lt_u32 vcc, 23, v{LANE}\ns_mul_i32 s{sT}, s3, 24\nv_add_u32 v{LS}, s{sT}, v{LANE}\nv_subrev_u32 v{FL}, 24, v{LS}\nv_cndmask_b32 v{LS}, v{LS}, v{FL}, vcc")
            e(f"v_lshrrev_b32 v{FL}, 1, v{LS}\nv_lshlrev_b32 v{FL}, 6, v{FL}\nv_and_b32 v{VKV}, 1, v{LS}\nv_lshl_add_u32 v{FL}, v{VKV}, 4, v{FL}")
            e(f"v_cndmask_b32 v{VKV}, 0, 32, vcc\nv_add_u32 v{FL}, v{FL}, v{VKV}\nv_lshlrev_b32 v{LS}, 2, v{LS}\nv_mov_b32 v{VKV}, 0xa00\nv_cndmask_b32 v{VKV}, 0, v{VKV}, vcc\nv_add_u32 v{LS}, v{LS}, v{VKV}")
            e(f"v_lshlrev_b32 v{VKV}, 4, v{LANE}")
            e(f"s_mul_i32 s{sU}, s{sROW}, 6144\ns_add_u32 s{sU}, s{sU}, {WS_Y}\ns_waitcnt lgkmcnt(0)")
            if boost: e(f"s_cmp_gt_i32 s{sU2}, 0\ns_cselect_b64 vcc, -1, 0")
    stamp(4)
    RB = [S0+12] + [pool.get() for _ in range(8)]
    e("s_nop 7")
    for r in range(4): e(f"v_mul_f32 v{ACC+r}, v{ACC+r}, v{MX}")
    for r in range(4): e(f"ds_write_b32 v{T0}, v{ACC+r} offset:{L_QP+16*r}")
    e("s_waitcnt lgkmcnt(0)\ns_barrier")
    for j in range(8): e(f"ds_read_b128 {q(RB[j])}, v{T1} offset:{L_QP+512*j}")
    for j in range(1, 8):
        e(f"s_waitcnt lgkmcnt({7-j})")
        for r in range(4): e(f"v_add_f32 v{RB[0]+r}, v{RB[0]+r}, v{RB[j]+r}")
    for r in range(4): e(f"v_cvt_pk_bf16_f32 v{RB[0]+r}, v{RB[0]+r}, v{RB[0]+r}")
    if "wo19" in e.vm: e.wait("wo19")
    for rg in range(4):
        cur = X if rg % 2 == 0 else Y
        for w in range(4): e(f"v_and_b32 v{cur+w}, v{RB[0]+rg}, v{QF+w}")
        e("s_nop 1")
        for t in range(5):
            e(f"v_mfma_f32_16x16x32_bf16 {q(yacc[t])}, {q(cur)}, {q(WO[rg*5+t])}, {q(yacc[t])}")
    e("s_nop 3")
    for t in range(5):
        if t == 4: e("s_nop 3")
        e(f"ds_write_b128 v{VO}, {q(yacc[t])} offset:{L_YP+512*t}")
    e("s_waitcnt lgkmcnt(0)\ns_barrier")
    e("s_mov_b32 exec_hi, 0xffff")
    for j in range(9):
        for r in range(3): e(f"ds_read_b32 v{RB[j]+r}, v{LS} offset:{L_YP+5120*j+768*r}")
        if j == 4: e("s_waitcnt lgkmcnt(3)\n" + "\n".join(f"v_add_f32 v{RB[0]+r}, v{RB[0]+r}, v{RB[jj]+r}" for jj in (1, 2, 3) for r in range(3)))
    for j in range(4, 9):
        e(f"s_waitcnt lgkmcnt({3*(8-j)})")
        for r in range(3): e(f"v_add_f32 v{RB[0]+r}, v{RB[0]+r}, v{RB[j]+r}")
    e(f"v_add3_u32 v{RB[0]+3}, v{RB[0]}, v{RB[0]+1}, v{RB[0]+2}\nv_add_u32 v{RB[0]+3}, s{sTAG}, v{RB[0]+3}")
    e(f"buffer_store_dwordx4 {q(RB[0])}, v{FL}, s[{SWS}:{SWS+3}], s{sU} offen sc1")
    if stamps:
        stamp(1)
        e("s_cmp_lg_u32 s3, 0\ns_cbranch_scc1 L_end")
        stamp_store([(0, 0), (1, 1), (2, 2), (3, 3), (4, 4), (5, 6)], 0, X)
        e(f"s_getreg_b32 s{sT}, hwreg(HW_REG_XCC_ID)\ns_getreg_b32 s{sT2}, hwreg(HW_REG_HW_ID)\nv_mov_b32 v{X+2}, s{sT}\nv_mov_b32 v{X+3}, s{sT2}")
        e(f"buffer_store_dwordx2 {d2(X+2)}, v{X}, s[{SWS}:{SWS+3}], 0 offen offset:56")
    e("s_endpgm")

    e.vm = []
    e("L_aux:")
    if aux_prio: e(f"s_setprio {aux_prio}")
    e(f"v_mov_b32 v4, 0\nv_mov_b32 v5, 0\nv_mov_b32 v6, 0\nv_mov_b32 v7, 0\nds_write_b128 v4, v[4:7] offset:{L_SY}\nds_write_b128 v4, v[4:7] offset:{L_SY+16}\ns_waitcnt lgkmcnt(0)\ns_barrier")
    e(f"s_add_u32 s{sEX}, s26, {WS_EP}\ns_addc_u32 s{sEX+1}, s27, 0\ns_load_dword s{sTAG}, s[{sEX}:{sEX+1}], 0")
    GB = 8
    e(f"v_lshlrev_b32 v1, 4, v{LANE}")
    e(f"s_waitcnt lgkmcnt(0)\ns_add_u32 s{sTAG}, s{sTAG}, 1\nv_mov_b32 v3, s{sTAG}")
    e(f"ds_write_b32 v4, v3 offset:{L_QF+256}")
    e(f"s_lshl_b32 s{sT}, s2, 11\ns_add_u32 s{sT}, s{sT}, {WS_P0}\nv_lshlrev_b32 v2, 5, v{LANE}")
    lds_wait(5, 4, L_SY, "v_cmp_ne_u32 vcc, 8, v5", 1, "p")
    for j in range(8): e(f"ds_read_b128 {q(GB+4*j)}, v1 offset:{L_QP+1024*j}")
    for j in range(1, 8):
        e(f"s_waitcnt lgkmcnt({7-j})")
        for r in range(4): e(f"v_add_f32 v{GB+r}, v{GB+r}, v{GB+4*j+r}")
    e(f"v_mov_b32 v{GB+4}, v{GB+2}\nv_mov_b32 v{GB+6}, v{GB+3}\nv_mov_b32 v{GB+2}, v{GB+1}")
    for k in range(4): e(f"v_add_u32 v{GB+2*k+1}, v3, v{GB+2*k}")
    e(f"buffer_store_dwordx4 {q(GB)}, v2, s[{SWS}:{SWS+3}], s{sT} offen sc1")
    e(f"buffer_store_dwordx4 {q(GB+4)}, v2, s[{SWS}:{SWS+3}], s{sT} offen offset:16 sc1")
    stamp(1)
    e(f"v_lshrrev_b32 v5, 5, v{LANE}\nv_lshlrev_b32 v5, 11, v5\nv_and_b32 v6, 31, v{LANE}\nv_lshl_add_u32 v5, v6, 5, v5")
    e(f"s_lshl_b32 s{sT}, s{sH}, 12\ns_lshl_b32 s{sT2}, s{sB}, 10\ns_add_u32 s{sT}, s{sT}, s{sT2}\ns_add_u32 s{sT}, s{sT}, {WS_P0}")
    def spin(loadtxt, cmptxt, sleep, tag):
        ok = e.label(tag+"ok"); lp = e.label(tag+"lp")
        e(f"{lp}:")
        e(loadtxt + "\ns_waitcnt vmcnt(0)")
        e(cmptxt + f"\ns_cbranch_vccz {ok}")
        e(f"s_add_u32 s{sSPIN}, s{sSPIN}, 1\ns_cmp_gt_u32 s{sSPIN}, {SPIN_MAX}\ns_cbranch_scc1 {ok}")
        if sleep: e(f"s_sleep {sleep}")
        e(f"s_branch {lp}")
        e(f"{ok}:")
    QG = GB + 8
    spin(f"buffer_load_dwordx4 {q(QG)}, v5, s[{SWS}:{SWS+3}], s{sT} offen sc1\nbuffer_load_dwordx4 {q(QG+4)}, v5, s[{SWS}:{SWS+3}], s{sT} offen offset:16 sc1",
         "\n".join(f"v_add_u32 v{GB+k}, v3, v{QG+2*k}\nv_xor_b32 v{GB+k}, v{GB+k}, v{QG+2*k+1}" for k in range(4)) + f"\nv_or3_b32 v7, v{GB}, v{GB+1}, v{GB+2}\nv_or_b32 v7, v7, v{GB+3}\nv_cmp_ne_u32 vcc, 0, v7", q_sleep, "q")
    e(f"v_lshlrev_b32 v6, 3, v6")
    for r in range(4): e(f"v_mov_b32 v{GB+r}, v{QG+2*r}\nv_mov_b32 v{GB+4+r}, v{QG+2*r}")
    e("s_nop 1")
    for r in range(4): e(f"v_permlane32_swap_b32 v{GB+r}, v{GB+4+r}")
    e("s_nop 1")
    for r in range(4): e(f"v_add_f32 v{GB+r}, v{GB+r}, v{GB+4+r}")
    e(f"v_cvt_pk_bf16_f32 v{GB}, v{GB}, v{GB+1}\nv_cvt_pk_bf16_f32 v{GB+1}, v{GB+2}, v{GB+3}")
    e(f"ds_write_b64 v6, {d2(GB)} offset:{L_QF}")
    e(f"v_mov_b32 v5, 1\ns_waitcnt lgkmcnt(0)\nds_write_b32 v4, v5 offset:{L_SY+4}")
    stamp(2)
    if dbg: e("s_memrealtime s[66:67]")
    FM = [40, 41, 42, 43]; FX = 44; PG = 48; WDQ = 56; FD = 76
    SWD = SW
    srd(e, SWD, 20, 21, 0 if nowd else 4608*1152)
    e(f"v_lshrrev_b32 v5, 4, v{LANE}\nv_mul_u32_u24 v5, 1152, v5\nv_and_b32 v6, 15, v{LANE}\nv_lshl_add_u32 v5, v6, 4, v5")
    e(f"s_add_u32 s{sT}, s{sF0}, 32\ns_mul_i32 s{sT}, s{sT}, 1152")
    for t in range(5): e(f"buffer_load_dwordx4 {q(WDQ+4*t)}, v5, s[{SWD}:{SWD+3}], s{sT} offen offset:{256*t}{df}")
    e(f"v_min_u32 v5, 35, v{LANE}\nv_add_u32 v5, s{sF0}, v5\nv_lshrrev_b32 v6, 7, v5\nv_lshlrev_b32 v6, 12, v6\nv_and_b32 v5, 127, v5\nv_lshl_add_u32 v5, v5, 3, v6")
    e(f"s_lshl_b32 s{sT}, s{sB}, 10\ns_add_u32 s{sT}, s{sT}, {WS_P0 + 64*2048}\ns_add_u32 s{sT2}, s{sT}, {72*2048}")
    masks(e, FM, LANE, FX, FX+1)
    ld = []; ck = []
    for k, (so, of_) in enumerate(((sT, 0), (sT, 2048), (sT2, 0), (sT2, 2048))):
        ld.append(f"buffer_load_dwordx2 {d2(PG+2*k)}, v5, s[{SWS}:{SWS+3}], s{so} offen offset:{of_} sc1")
        ck.append(f"v_add_u32 v{FX+k}, v3, v{PG+2*k}\nv_xor_b32 v{FX+k}, v{FX+k}, v{PG+2*k+1}")
    ck.append(f"v_or3_b32 v{FX}, v{FX}, v{FX+1}, v{FX+2}\nv_or_b32 v{FX}, v{FX}, v{FX+3}\nv_cmp_ne_u32 vcc, 0, v{FX}")
    spin("\n".join(ld), "\n".join(ck), 8, "d")
    K1 = f32(0.044715); K2 = f32(-2.0*0.7978845608028654*LOG2E)
    g = PG; u = PG+4; a = PG+1
    e(f"s_mov_b32 s{sT}, {hx(K1)}\nv_add_f32 v{g}, v{g}, v{g+2}\nv_add_f32 v{u}, v{u}, v{u+2}")
    bf16r(e, g, g); bf16r(e, u, u)
    e(f"v_mul_f32 v{a}, v{g}, v{g}\nv_fma_f32 v{a}, v{a}, s{sT}, 1.0\nv_mul_f32 v{a}, v{a}, v{g}\nv_mul_f32 v{a}, {hx(K2)}, v{a}")
    e(f"v_exp_f32 v{a}, v{a}\ns_nop 0\nv_add_f32 v{a}, 1.0, v{a}\nv_rcp_f32 v{a}, v{a}\ns_nop 0\nv_mul_f32 v{a}, v{a}, v{g}")
    bf16r(e, a, a)
    e(f"v_mul_f32 v{a}, v{a}, v{u}\nv_cvt_pk_bf16_f32 v{a}, v{a}, v{a}\nv_lshlrev_b32 v5, 2, v{LANE}")
    e(f"ds_write_b32 v5, v{a} offset:{L_H}")
    e(f"v_mov_b32 v6, 1\nv_lshrrev_b32 v5, 4, v{LANE}\nv_lshlrev_b32 v5, 2, v5\ns_waitcnt lgkmcnt(0)\nds_write_b32 v4, v6 offset:{L_SY+8}")
    e(f"ds_read_b32 v5, v5 offset:{L_H+128}")
    e(f"v_and_b32 v6, 8, v{LANE}\nv_cmp_ne_u32 vcc, 0, v6\ns_waitcnt lgkmcnt(0)\ns_nop 0\nv_cndmask_b32 v5, 0, v5, vcc")
    for w in range(4): e(f"v_and_b32 v{FX+w}, v5, v{FM[w]}")
    e("s_nop 1")
    for t in range(5): e(f"v_mfma_f32_16x16x32_bf16 {q(FD+4*t)}, {q(FX)}, {q(WDQ+4*t)}, 0")
    e(f"v_and_b32 v5, 15, v{LANE}\nv_lshlrev_b32 v5, 5, v5\nv_and_b32 v6, 16, v{LANE}\nv_add_u32 v5, v5, v6\nv_lshrrev_b32 v6, 5, v{LANE}\nv_mul_u32_u24 v6, 2560, v6\nv_add_u32 v5, v5, v6")
    e("s_nop 3")
    for t in range(5): e(f"ds_write_b128 v5, {q(FD+4*t)} offset:{L_YP+8*5120+512*t}")
    stamp(3)
    e("s_waitcnt lgkmcnt(0)")
    A = GB
    e(f"v_and_b32 v5, 7, v{LANE}\nv_lshlrev_b32 v5, 3, v5")
    e(f"s_lshl_b32 s{sT}, s{sBH}, 7\ns_add_u32 s{sT}, s{sT}, {WS_MLW}\ns_lshl_b32 s{sT2}, s{sS}, 4\nv_mov_b32 v6, s{sT2}\nv_and_b32 v7, 3, v{LANE}\nv_lshlrev_b32 v7, 4, v7")
    lds_wait(A, 4, L_SY+12, f"v_cmp_ne_u32 vcc, 8, v{A}", 8, "k")
    e(f"ds_read_b64 {d2(A)}, v5 offset:{L_ML}\ns_waitcnt lgkmcnt(0)\nv_mov_b32 v{A+4}, v{A}")
    def red8(op, v):
        for pm in ("quad_perm:[1,0,3,2]", "quad_perm:[2,3,0,1]", "row_half_mirror"):
            e(f"s_nop 1\nv_{op}_f32_dpp v{v}, v{v}, v{v} {pm} {DPPF}")
    red8("max", A+4)
    e(f"v_sub_f32 v{A+5}, v{A}, v{A+4}\nv_exp_f32 v{A+5}, v{A+5}\ns_nop 0\nv_mul_f32 v{A+5}, v{A+5}, v{A+1}")
    red8("add", A+5)
    e(f"v_mov_b32 v{A+6}, 0\nv_add3_u32 v{A+7}, v{A+4}, v{A+5}, v3\ns_mov_b64 exec, 1")
    e(f"buffer_store_dwordx4 {q(A+4)}, v6, s[{SWS}:{SWS+3}], s{sT} offen sc1\ns_mov_b64 exec, -1")
    spin(f"buffer_load_dwordx4 {q(A+8)}, v7, s[{SWS}:{SWS+3}], s{sT} offen sc1",
         f"v_add3_u32 v{A+10}, v{A+8}, v{A+9}, v3\nv_cmp_ne_u32 vcc, v{A+10}, v{A+11}", ml_sleep, "m")
    e(f"v_mov_b32 v{A+10}, v{A+8}")
    for pm in ("quad_perm:[1,0,3,2]", "quad_perm:[2,3,0,1]"): e(f"s_nop 1\nv_max_f32_dpp v{A+10}, v{A+10}, v{A+10} {pm} {DPPF}")
    e(f"v_sub_f32 v{A+8}, v{A+8}, v{A+10}\nv_exp_f32 v{A+8}, v{A+8}\nv_sub_f32 v{A}, v{A}, v{A+10}\nv_exp_f32 v{A}, v{A}\nv_mul_f32 v{A+8}, v{A+8}, v{A+9}")
    for pm in ("quad_perm:[1,0,3,2]", "quad_perm:[2,3,0,1]"): e(f"s_nop 1\nv_add_f32_dpp v{A+8}, v{A+8}, v{A+8} {pm} {DPPF}")
    e(f"v_rcp_f32 v{A+8}, v{A+8}\nv_lshrrev_b32 v5, 1, v5\nv_mul_f32 v{A}, v{A}, v{A+8}\nv_mov_b32 v6, 1")
    e(f"ds_write_b32 v5, v{A} offset:{L_ML+64}\ns_waitcnt lgkmcnt(0)\nds_write_b32 v4, v6 offset:{L_SY+16}\ns_waitcnt lgkmcnt(0)")
    if aux_prio: e("s_setprio 0")
    e("s_cmp_lt_u32 s2, 192\ns_cbranch_scc1 L_fin")
    if stamps: stamp_store([(1, 0), (2, 1), (3, 5)], 1, 44)
    e(f"s_cmp_lg_u32 s2, 255\ns_cbranch_scc1 L_end\ns_mov_b64 exec, -1\nv_lshlrev_b32 v5, 11, v{LANE}\nv_add_u32 v5, {WS_P0}, v5")
    e(f"s_mov_b32 s{sT}, {64*2048}\ns_mov_b32 s{sT2}, {128*2048}\ns_mov_b32 s{sU}, {192*2048}")
    spin("\n".join(f"buffer_load_dwordx2 {d2(GB+2*k)}, v5, s[{SWS}:{SWS+3}], {so} offen sc1" for k, so in enumerate(("0", f"s{sT}", f"s{sT2}", f"s{sU}"))),
         "\n".join(f"v_add_u32 v{GB+2*k}, v3, v{GB+2*k}\nv_xor_b32 v{GB+2*k}, v{GB+2*k}, v{GB+2*k+1}" for k in range(4)) + f"\nv_or3_b32 v7, v{GB}, v{GB+2}, v{GB+4}\nv_or_b32 v7, v7, v{GB+6}\nv_cmp_ne_u32 vcc, 0, v7", 64, "e")
    e(f"v_mov_b32 v2, {WS_EP}\ns_mov_b64 exec, 1")
    e(f"buffer_store_dword v3, v2, s[{SWS}:{SWS+3}], 0 offen sc1")
    e("s_endpgm")
    e("L_fin:")
    sFB, sCB = sB, sH
    e(f"s_cmp_ge_u32 s2, 96\ns_cselect_b32 s{sFB}, 1, 0\ns_mul_i32 s{sT}, s{sFB}, 96\ns_sub_u32 s{sCB}, s2, s{sT}")
    sGB = sKV
    e(f"v_and_b32 v2, 1, v{LANE}\nv_lshrrev_b32 v4, 4, v{LANE}\nv_min_u32 v4, 2, v4\nv_mul_u32_u24 v4, 192, v4\nv_add_u32 v2, v2, v4")
    e(f"s_mul_i32 s{sT}, s{sFB}, 576\ns_lshl_b32 s{sT2}, s{sCB}, 1\ns_add_u32 s{sT}, s{sT}, s{sT2}")
    e(f"v_add_u32 v2, s{sT}, v2\nv_lshlrev_b32 v6, 1, v2")
    e("global_load_ushort v7, v6, s[4:5]")
    e(f"s_mul_i32 s{sGB}, s{sFB}, {128*6144}\ns_lshl_b32 s{sT}, s{sCB}, 6\ns_add_u32 s{sGB}, s{sGB}, s{sT}\ns_add_u32 s{sGB}, s{sGB}, {WS_Y}")
    e(f"v_lshrrev_b32 v1, 2, v{LANE}\nv_mul_u32_u24 v1, 6144, v1\nv_and_b32 v2, 3, v{LANE}\nv_lshl_add_u32 v1, v2, 4, v1")
    groups = [(GB+4*k, 1, sGB, k*16*6144) for k in range(8)]
    CK = 44
    def reset():
        e("v_not_b32 v2, v3")
        for g, _, _, _ in groups:
            e(f"v_mov_b32 v{g}, 0\nv_mov_b32 v{g+1}, 0\nv_mov_b32 v{g+2}, 0\nv_mov_b32 v{g+3}, v2")
    def poll(groups, sleep, tagp):
        lp = e.label(tagp+"lp"); ok = e.label(tagp+"ok")
        e(f"{lp}:")
        for k, (g, _, _, _) in enumerate(groups): e(f"v_add3_u32 v{CK+k}, v{g}, v{g+1}, v{g+2}")
        for k, (g, _, _, _) in enumerate(groups): e(f"v_sub_u32 v{CK+k}, v{g+3}, v{CK+k}")
        for k, (g, _, _, _) in enumerate(groups): e(f"v_xor_b32 v{CK+k}, v3, v{CK+k}")
        for k in range(len(groups)): e(f"v_or_b32_dpp v{CK+k}, v{CK+k}, v{CK+k} quad_perm:[1,0,3,2] {DPPF}")
        for k in range(len(groups)): e(f"v_or_b32_dpp v{CK+k}, v{CK+k}, v{CK+k} quad_perm:[2,3,0,1] {DPPF}")
        e(f"s_mov_b32 s{sEX}, 0")
        for k, (g, va, sb, off) in enumerate(groups):
            sk = e.label(tagp+"sk")
            e(f"v_cmp_ne_u32 vcc, 0, v{CK+k}\ns_add_u32 s{sT2}, s{sb}, {off}")
            e(f"s_bcnt1_i32_b64 s{sEX+1}, vcc\ns_add_u32 s{sEX}, s{sEX}, s{sEX+1}\ns_mov_b64 exec, vcc\ns_cbranch_execz {sk}")
            e(f"buffer_load_dwordx4 {q(g)}, v{va}, s[{SWS}:{SWS+3}], s{sT2} offen sc1")
            e(f"{sk}:")
            e("s_mov_b64 exec, -1")
        e(f"s_cmp_eq_u32 s{sEX}, 0\ns_cbranch_scc1 {ok}")
        e("s_waitcnt vmcnt(0)")
        e(f"s_add_u32 s{sSPIN}, s{sSPIN}, 1\ns_cmp_gt_u32 s{sSPIN}, {SPIN_MAX}\ns_cbranch_scc1 {ok}")
        for rows, sl in sleep:
            nx = e.label(tagp+"nx")
            e(f"s_cmp_lt_u32 s{sEX}, {4*rows}\ns_cbranch_scc1 {nx}\ns_sleep {sl}\ns_branch {lp}")
            e(f"{nx}:")
        e(f"s_branch {lp}")
        e(f"{ok}:")
    reset()
    e("s_waitcnt vmcnt(0)\nv_lshlrev_b32 v7, 16, v7")
    e("s_barrier\ns_barrier")
    stamp(4)
    if dbg: e("s_memrealtime s[68:69]")
    poll(groups, ysl, "y")
    for k in range(1, 8):
        for r in range(3): e(f"v_add_f32 v{GB+r}, v{GB+r}, v{GB+4*k+r}")
    e(f"v_mov_b32 v{GB+3}, 0")
    for rr in (4, 8):
        e("s_nop 1")
        for r in range(3): e(f"v_add_f32_dpp v{GB+r}, v{GB+r}, v{GB+r} row_ror:{rr} {DPPF}")
    e("s_nop 1")
    e(f"v_permlane16_swap_b32 v{GB}, v{GB+1}\nv_permlane16_swap_b32 v{GB+2}, v{GB+3}\ns_nop 1")
    e(f"v_add_f32 v{GB}, v{GB}, v{GB+1}\nv_add_f32 v{GB+2}, v{GB+2}, v{GB+3}\ns_nop 1")
    e(f"v_permlane32_swap_b32 v{GB}, v{GB+2}\ns_nop 1")
    e(f"v_add_f32 v{GB}, v{GB}, v{GB+2}")
    bf16r(e, GB, GB)
    e("s_nop 1")
    e(f"v_mov_b32_dpp v5, v{GB} quad_perm:[2,3,2,3] {DPPF}")
    e(f"v_add_f32 v{GB}, v7, v{GB}")
    bf16r(e, GB, GB)
    e(f"v_add_f32 v{GB}, v{GB}, v5\nv_cvt_pk_bf16_f32 v{GB}, v{GB}, v{GB}")
    e("s_mov_b32 exec_lo, 0x00030003\ns_mov_b32 exec_hi, 0x00000003")
    e(f"global_store_short v6, v{GB}, s[22:23]")
    e("s_mov_b64 exec, -1")
    if stamps:
        stamp(5)
        stamp_store([(5, 5)], 0, 56)
        stamp_store([(1, 0), (2, 1), (3, 5), (4, 4)], 1, 56)
        e("s_mov_b64 exec, -1")
    if dbg:
        e("s_cmp_lg_u32 s2, 0\ns_cbranch_scc1 L_end\ns_mov_b64 exec, 1")
        e("s_memrealtime s[70:71]\ns_waitcnt lgkmcnt(0)\ns_sub_u32 s66, s66, s64\ns_sub_u32 s68, s68, s64\ns_sub_u32 s70, s70, s64")
        e("v_mov_b32 v8, s66\nv_mov_b32 v9, s68\nv_mov_b32 v10, s70\nv_mov_b32 v11, s59\nv_mov_b32 v2, 0\nglobal_store_dwordx4 v2, v[8:11], s[24:25]")
    e("L_end:")
    e("s_endpgm")
    e.o.append(f'.section .rodata,"a"\n.p2align 6\n.amdhsa_kernel {KN}')
    e.o.append("  .amdhsa_next_free_vgpr 168\n  .amdhsa_next_free_sgpr 90\n  .amdhsa_accum_offset 168")
    e.o.append("  .amdhsa_group_segment_fixed_size 0\n  .amdhsa_kernarg_size 96\n  .amdhsa_user_sgpr_count 2\n  .amdhsa_user_sgpr_kernarg_segment_ptr 1\n  .amdhsa_system_sgpr_workgroup_id_x 1\n  .amdhsa_float_denorm_mode_32 3\n.end_amdhsa_kernel")
    open(name, "w").write("\n".join(e.o) + "\n")

if __name__ == "__main__":
    gen("parallel_sum__mha_block_cached__geglu_ffn__decode.s", kfill=False)
    gen("k_a.s", stamps=True, kfill=False)
    gen("h_a.s", kfill=False)
    gen("h_b.s", kfill=True, BURST=12, WI=5, wi_until=20)
    gen("h_c.s", kfill=False, W=4)
    gen("h_d.s", kfill=False, PRE=16)
```

```python
import struct, sys
from gen import (KN, f32, hx, HEADER, E, q, d2, DPPF, allreduce, bf16r, ln_norm, masks, srd, LOG2E, SCALE, SPIN_MAX)

WS_Y   = 0x100000
WS_MLW = 0x290000
WS_P0  = 0x2A0000
WS_EP  = 0x330040
WS_SIZE = 0x340000
L_XT = 0; L_QP = 4096; L_QF = 12288; L_H = 12800; L_SY = 13056; L_ML = 13120; L_YP = 13312; L_END = L_YP + 9*5120

class Pool:
    def __init__(s, quads): s.free = list(quads)
    def get(s): return s.free.pop(0)
    def put(s, r): s.free.append(r)

def gen(name, W=3, PRE=26, stamps=False, wo_gap=2, catch=2, aux_prio=3, mlr_at=8, coef_at=13, q_sleep=2, BURST=10,
        y_sleep=0, kf=' nt', vf=' nt', wf='', of='', df='', wd_at=1, ffn_at=5, kfill=True, dbg=False, ysl=(), nocomp=False, nowo=False, noq=False, boost=None, boost_at=1, WEND=3, wend_from=116, nowd=False, nounit=False, ml_sleep=32, WI=3, wi_until=0, prio_hi=False, kfirst=0, WB=9, rowint=0, merge=False, amp=0):
    e = E()
    YROW = 3072 if merge else 6144; NFB = 48 if merge else 96
    e.o.append(HEADER.rstrip("\n"))
    e.o.append(f"; @launch grid=(256,1,1) block=(576,1,1) lds={L_END}")
    e.o.append('.amdgcn_target "amdgcn-amd-amdhsa--gfx950"\n.text')
    e.o.append(f".globl {KN}\n.p2align 8\n.type {KN},@function\n{KN}:")
    SK, SV, SW, SX, SWS, SWO = 28, 32, 36, 40, 44, 48
    sH, sB, sS, sBH, sT, sKV, sT2, sSPIN, sROW, sSTR = 52, 53, 54, 55, 56, 57, 58, 59, 60, 61
    sEX = 62; sST = 64; sU = 84; sU2 = 85; sU3 = 86; sTAG = 87; sF0 = 88
    def stamp(i):
        if stamps: e(f"s_memrealtime s[{sST+2*i}:{sST+2*i+1}]")
    def stamp_store(idx_list, region, vt):
        e(f"s_waitcnt lgkmcnt(0)\ns_mov_b64 exec, 1\ns_lshl_b32 s{sT}, s2, 6\ns_add_u32 s{sT}, s{sT}, {16384*region}\nv_mov_b32 v{vt}, s{sT}")
        for i, pos in idx_list:
            e(f"v_mov_b32 v{vt+2}, s{sST+2*i}\nv_mov_b32 v{vt+3}, s{sST+2*i+1}")
            e(f"buffer_store_dwordx2 {d2(vt+2)}, v{vt}, s[{SWS}:{SWS+3}], 0 offen offset:{8*pos}\ns_nop 1")
    def lds_wait(vd, vz, off, cmp, sleep, tag):
        lp = e.label(tag+"w"); ok = e.label(tag+"ok")
        e(f"{lp}:")
        e(f"ds_read_b32 v{vd}, v{vz} offset:{off}\ns_waitcnt lgkmcnt(0)\n{cmp}\ns_cbranch_vccz {ok}")
        e(f"s_add_u32 s{sSPIN}, s{sSPIN}, 1\ns_cmp_gt_u32 s{sSPIN}, {SPIN_MAX*20}\ns_cbranch_scc1 {ok}\ns_sleep {sleep}\ns_branch {lp}")
        e(f"{ok}:")
        e(f"s_mov_b32 s{sSPIN}, 0")
    e("s_cmp_ge_u32 s2, 256\ns_cbranch_scc1 L_end")
    stamp(0)
    if dbg or amp: e("s_memrealtime s[64:65]")
    e("s_load_dwordx16 s[4:19], s[0:1], 0\ns_load_dwordx8 s[20:27], s[0:1], 64")
    e("v_lshrrev_b32 v1, 6, v0\nv_and_b32 v0, 63, v0")
    e(f"s_and_b32 s{sH}, s2, 31")
    e("v_readfirstlane_b32 s3, v1")
    e(f"s_bfe_u32 s{sB}, s2, 0x10005\ns_lshr_b32 s{sS}, s2, 6")
    e(f"s_lshl_b32 s{sBH}, s{sB}, 5\ns_add_u32 s{sBH}, s{sBH}, s{sH}")
    e(f"s_lshl_b32 s{sROW}, s{sBH}, 2\ns_add_u32 s{sROW}, s{sROW}, s{sS}")
    e(f"s_mov_b32 s{sSPIN}, 0\ns_lshr_b32 s{sU}, s2, 1")
    e(f"s_and_b32 s{sF0}, s{sROW}, 127\ns_mul_i32 s{sF0}, s{sF0}, 36")
    e("s_waitcnt lgkmcnt(0)")
    srd(e, SWS, 26, 27, WS_SIZE)
    e("s_cmp_eq_u32 s3, 8\ns_cbranch_scc1 L_aux")

    LANE = 0; VKV = 1; M = [2, 3, 4, 5]; QF = 6; T0 = 10; T1 = 11
    ACC = 12; X = 16; Y = 20; S0 = 24; MX = 164; LS = 165; VO = 166; FL = 167
    pool = Pool(range(40, 164, 4))
    e(f"s_min_u32 s{sU}, s{sU}, 103")
    e(f"s_cmp_lt_u32 s{sU}, 68\ns_cselect_b64 s[{SW}:{SW+1}], s[16:17], s[18:19]\ns_cselect_b32 s{sT}, 32, 68")
    e(f"s_cmp_lt_u32 s{sU}, 32\ns_cselect_b64 s[{SW}:{SW+1}], s[10:11], s[{SW}:{SW+1}]\ns_cselect_b32 s{sT}, 0, s{sT}")
    e(f"s_cselect_b32 s{sSTR}, 8, 9\ns_lshl_b32 s{sSTR}, s{sSTR}, 10\ns_mul_i32 s{SW+2}, s{sSTR}, 576")
    e(f"s_cmp_lt_u32 s2, {0 if nounit else 208}\ns_cselect_b32 s{SW+2}, s{SW+2}, 0\ns_mov_b32 s{SW+3}, 0x20000")
    e(f"s_sub_u32 s{sT}, s{sU}, s{sT}\ns_lshl_b32 s{sT}, s{sT}, 8")
    e(f"s_and_b32 s{sU2}, s2, 1\ns_mul_i32 s{sU2}, s{sU2}, 288\ns_mul_i32 s{sT2}, s3, 36\ns_add_u32 s{sU2}, s{sU2}, s{sT2}")
    sWO = sU3
    e(f"s_mul_i32 s{sT2}, s{sU2}, s{sSTR}\ns_add_u32 s{sWO}, s{sT}, s{sT2}")
    srd(e, SX, 4, 5, 2304)
    xq = [pool.free.pop() for _ in range(8)]
    XA = [xq[0]+i for i in range(4)] + [xq[1]+i for i in range(4)] + [xq[2]]; XO = xq[2]+1
    TMP = [xq[2]+2, xq[2]+3] + [xq[k]+i for k in range(3, 7) for i in range(4)]
    e(f"v_mul_u32_u24 v{T0}, 36, v{LANE}")
    e.vmem(f"buffer_load_dwordx4 {q(xq[0])}, v{T0}, s[{SX}:{SX+3}], 0 offen", "x")
    e.vmem(f"buffer_load_dwordx4 {q(xq[1])}, v{T0}, s[{SX}:{SX+3}], 0 offen offset:16", "x")
    e.vmem(f"buffer_load_dword v{xq[2]}, v{T0}, s[{SX}:{SX+3}], 0 offen offset:32", "x")
    e(f"v_lshrrev_b32 v{T0}, 5, v{LANE}\nv_mul_u32_u24 v{T0}, 1152, v{T0}\nv_and_b32 v{T1}, 31, v{LANE}\nv_lshl_add_u32 v{T0}, v{T1}, 2, v{T0}")
    e(f"s_lshl_b32 s{sT2}, s{sU2}, 1\nv_add_u32 v{T1}, s{sT2}, v{T0}")
    e.vmem(f"buffer_load_dword v{XO}, v{T1}, s[{SX}:{SX+3}], 0 offen", "x")
    VOW = LS
    e(f"v_lshrrev_b32 v{VOW}, 4, v{LANE}\nv_mul_lo_u32 v{VOW}, v{VOW}, s{sSTR}\nv_and_b32 v{FL}, 15, v{LANE}\nv_lshl_add_u32 v{VOW}, v{FL}, 4, v{VOW}")
    e(f"s_lshl_b32 s{sSTR}, s{sSTR}, 2")
    WQ = [pool.free.pop() for _ in range(9)]
    wn = [0]
    def w_issue():
        n = wn[0]; wn[0] += 1
        e.vmem(f"buffer_load_dwordx4 {q(WQ[n])}, v{VOW}, s[{SW}:{SW+3}], s{sWO} offen{wf}", f"w{n}")
        if n < 8: e(f"s_add_u32 s{sWO}, s{sWO}, s{sSTR}")
    for n in range(WB): w_issue()
    srd(e, SK, 6, 7, 0x8000000)
    e(f"v_lshlrev_b32 v{VKV}, 4, v{LANE}")
    e(f"s_lshl_b32 s{sKV}, s{sBH}, 21\ns_lshl_b32 s{sT}, s{sS}, {19 if not rowint else 15 + (rowint-1)}\ns_add_u32 s{sKV}, s{sKV}, s{sT}\ns_lshl_b32 s{sT}, s3, 12\ns_add_u32 s{sKV}, s{sKV}, s{sT}")
    slot = {}; order = []; kvn = [0]; won = [0]; WO = {}; WD = {}
    def pace():
        w_ = WEND if kvn[0] > wend_from else (WI if kvn[0] <= wi_until else W)
        if len(order) >= w_:
            tg = order[-w_]
            if tg in e.vm: e.wait(tg)
    def kv_issue(paced=True):
        n = kvn[0]
        if n >= 128: return False
        if n >= 4 and not pool.free: return False
        kvn[0] += 1
        slot[n] = S0 + 4*n if n < 4 else pool.get()
        if paced: pace()
        t, i = (n % 64)//4, n % 4
        s = SK if n < 64 else SV
        if rowint:
            g_ = 1 << (rowint-1)
            toff = (t//g_)*4*g_*32768 + (t % g_)*32768
        else: toff = t*32768
        e(f"s_add_u32 s{sT2}, s{sKV}, {toff}")
        e.vmem(f"buffer_load_dwordx4 {q(slot[n])}, v{VKV}, s[{s}:{s+3}], s{sT2} offen offset:{1024*i}{kf if n < 64 else vf}", f"kv{n}")
        order.append(f"kv{n}")
        return True
    def wo_issue():
        n = won[0]
        if n >= 20 or len(pool.free) < 5: return False
        won[0] += 1
        rg, t = n//5, n % 5
        WO[n] = pool.get()
        if nowo: return True
        e(f"s_movk_i32 s{sT2}, {rg*4608}")
        e.vmem(f"buffer_load_dwordx4 {q(WO[n])}, v{FL}, s[{SWO}:{SWO+3}], s{sT2} offen offset:{t*256}{of}", f"wo{n}")
        return True
    for _ in range(BURST - 9): kv_issue(paced=False)
    e("s_barrier")
    if prio_hi:
        lb = e.label("pr")
        e(f"s_cmp_lt_u32 s3, 4\ns_cbranch_scc1 {lb}\ns_setprio 1")
        e(f"{lb}:")
    srd(e, SV, 8, 9, 0x8000000); srd(e, SWO, 12, 13, 4096*1152)
    masks(e, M, LANE, T0, T1)
    MEAN, SD, RINV = ACC, ACC+1, ACC+2
    e.wait("x")
    for k in range(9):
        e(f"v_lshlrev_b32 v{TMP[2*k]}, 16, v{XA[k]}\nv_and_b32 v{TMP[2*k+1]}, 0xffff0000, v{XA[k]}")
    e(f"v_add_f32 v{MEAN}, v{TMP[0]}, v{TMP[1]}\nv_add_f32 v{SD}, v{TMP[2]}, v{TMP[3]}")
    for k in range(4, 18, 2): e(f"v_add_f32 v{MEAN}, v{MEAN}, v{TMP[k]}\nv_add_f32 v{SD}, v{SD}, v{TMP[k+1]}")
    e(f"v_add_f32 v{MEAN}, v{MEAN}, v{SD}")
    allreduce(e, "add", MEAN, T0, x32=False)
    e(f"v_mul_f32 v{MEAN}, {hx(f32(1.0/576))}, v{MEAN}")
    for k in range(18): e(f"v_sub_f32 v{TMP[k]}, v{TMP[k]}, v{MEAN}")
    e(f"v_mul_f32 v{SD}, v{TMP[0]}, v{TMP[0]}\nv_mul_f32 v{RINV}, v{TMP[1]}, v{TMP[1]}")
    for k in range(2, 18, 2): e(f"v_fmac_f32 v{SD}, v{TMP[k]}, v{TMP[k]}\nv_fmac_f32 v{RINV}, v{TMP[k+1]}, v{TMP[k+1]}")
    e(f"v_add_f32 v{SD}, v{SD}, v{RINV}")
    allreduce(e, "add", SD, T0, x32=False)
    e(f"v_mul_f32 v{SD}, {hx(f32(1.0/576))}, v{SD}")
    bf16r(e, SD, SD)
    e(f"v_add_f32 v{SD}, {hx(f32(1e-5))}, v{SD}")
    bf16r(e, SD, SD)
    e(f"v_sqrt_f32 v{SD}, v{SD}\ns_nop 0")
    bf16r(e, SD, SD)
    e(f"v_rcp_f32 v{RINV}, v{SD}")
    bf16r(e, MEAN, MEAN)
    e(f"v_lshlrev_b32 v{X}, 16, v{XO}\nv_and_b32 v{X+1}, 0xffff0000, v{XO}")
    ln_norm(e, X+2, X, MEAN, SD, RINV, T0, T1)
    ln_norm(e, X+3, X+1, MEAN, SD, RINV, T0, T1)
    e(f"s_lshl_b32 s{sT}, s3, 9")
    e(f"v_lshrrev_b32 v{T0}, 5, v{LANE}\nv_lshlrev_b32 v{T0}, 8, v{T0}\nv_and_b32 v{T1}, 1, v{LANE}\nv_lshl_add_u32 v{T0}, v{T1}, 7, v{T0}")
    e(f"v_bfe_u32 v{T1}, v{LANE}, 1, 4\nv_lshl_add_u32 v{T0}, v{T1}, 2, v{T0}\nv_add_u32 v{T0}, s{sT}, v{T0}")
    e(f"ds_write_b32 v{T0}, v{X+2} offset:{L_XT}\nds_write_b32 v{T0}, v{X+3} offset:{L_XT+64}")
    e(f"v_bfe_u32 v{T0}, v{LANE}, 3, 1\nv_lshlrev_b32 v{T0}, 8, v{T0}\nv_lshrrev_b32 v{T1}, 4, v{LANE}\nv_lshl_add_u32 v{T0}, v{T1}, 6, v{T0}\nv_add_u32 v{T0}, s{sT}, v{T0}")
    e("s_waitcnt lgkmcnt(0)")
    X2 = [xq[3]+i for i in range(4)] + [xq[4]+i for i in range(4)] + [xq[5]]
    e(f"ds_read_b128 {q(xq[3])}, v{T0} offset:{L_XT}\nds_read_b128 {q(xq[4])}, v{T0} offset:{L_XT+16}\nds_read_b32 v{xq[5]}, v{T0} offset:{L_XT+32}")
    for r in range(4): e(f"v_mov_b32 v{ACC+r}, 0")
    e(f"v_and_b32 v{VO}, 15, v{LANE}\nv_lshlrev_b32 v{VO}, 5, v{VO}\nv_and_b32 v{T1}, 16, v{LANE}\nv_add_u32 v{VO}, v{VO}, v{T1}")
    e(f"v_lshrrev_b32 v{T1}, 5, v{LANE}\nv_lshl_add_u32 v{T0}, v{T1}, 9, v{VO}\ns_lshl_b32 s{sT}, s3, 10\nv_add_u32 v{T0}, s{sT}, v{T0}")
    e(f"v_mul_u32_u24 v{T1}, 2560, v{T1}\nv_add_u32 v{VO}, v{VO}, v{T1}")
    for r in (xq[0], xq[1], xq[2], xq[6], xq[7]): pool.put(r)
    e("s_waitcnt lgkmcnt(0)")
    for n in range(9):
        D = X if n % 2 == 0 else Y
        for w in range(4): e(f"v_and_b32 v{D+w}, v{X2[n]}, v{M[w]}")
        if f"w{n}" in e.vm: e.wait(f"w{n}")
        else: e("s_nop 0")
        e("s_nop 0")
        e(f"v_mfma_f32_16x16x32_bf16 {q(ACC)}, {q(D)}, {q(WQ[n])}, {q(ACC)}")
        if wn[0] < 9: w_issue()
        elif kfill: kv_issue(paced=False)
        pool.put(WQ[n])
    for r in (xq[3], xq[4], xq[5]): pool.put(r)
    e(f"v_mov_b32 v{T1}, 1\nv_mov_b32 v{X}, 0")
    e("s_nop 5")
    e(f"ds_write_b128 v{T0}, {q(ACC)} offset:{L_QP}")
    e(f"s_waitcnt lgkmcnt(0)\ns_mov_b64 exec, 1\nds_add_u32 v{X}, v{T1} offset:{L_SY}\ns_mov_b64 exec, -1")
    stamp(5)
    e(f"v_lshrrev_b32 v{T1}, 4, v{LANE}\nv_mul_u32_u24 v{T1}, 1152, v{T1}\nv_and_b32 v{T0}, 15, v{LANE}\nv_lshlrev_b32 v{T0}, 4, v{T0}\nv_add_u32 v{LS}, v{T1}, v{T0}")
    e(f"s_lshl_b32 s{sT}, s{sH}, 7\ns_lshl_b32 s{sT2}, s3, 4\ns_add_u32 s{sT}, s{sT}, s{sT2}\ns_mul_i32 s{sT}, s{sT}, 1152\nv_add_u32 v{FL}, s{sT}, v{LS}")
    SWD = SW
    srd(e, SWD, 20, 21, 0 if nowd else 4608*1152)
    sWD = sU3
    e(f"s_lshl_b32 s{sT}, s3, 2\ns_add_u32 s{sT}, s{sT}, s{sF0}\ns_mul_i32 s{sWD}, s{sT}, 1152\ns_sub_u32 s{sWD}, s{sWD}, 0")
    e(f"v_readfirstlane_b32 s{sU}, v{FL}")
    e(f"v_mov_b32 v{MX}, 0xff800000")
    while kvn[0] < PRE: assert kv_issue()
    lds_wait(T1, X, L_SY+4, f"v_cmp_eq_u32 vcc, 0, v{T1}", 2, "q")
    e(f"ds_read_b128 {q(QF)}, v{T0} offset:{L_QF}\nds_read_b32 v{T1}, v{X} offset:{L_QF+256}")
    stamp(2)
    e("s_waitcnt lgkmcnt(0)")
    e(f"v_readfirstlane_b32 s{sTAG}, v{T1}")
    def ctile(t):
        if f"kv{4*t+3}" in e.vm: e.wait(f"kv{4*t+3}")
        for j in range(4):
            for i in range(4):
                if nocomp: continue
                r = slot[4*t+i] + j
                if j == 0: e(f"v_dot2_f32_bf16 v{X+i}, v{r}, v{QF}, 0")
                else: e(f"v_dot2c_f32_bf16 v{X+i}, v{r}, v{QF+j}")
        if t > 0:
            for i in range(4): pool.put(slot[4*t+i])
        if nocomp: return
        e("s_nop 2")
        e(f"v_add_f32_dpp v{X}, v{X}, v{X} row_ror:8 row_mask:0xf bank_mask:0x3")
        e(f"v_add_f32_dpp v{X}, v{X+2}, v{X+2} row_ror:8 row_mask:0xf bank_mask:0xc")
        e(f"v_add_f32_dpp v{X+1}, v{X+1}, v{X+1} row_ror:8 row_mask:0xf bank_mask:0x3")
        e(f"v_add_f32_dpp v{X+1}, v{X+3}, v{X+3} row_ror:8 row_mask:0xf bank_mask:0xc")
        e("s_nop 0")
        e(f"v_add_f32_dpp v{X}, v{X}, v{X} row_shl:4 row_mask:0xf bank_mask:0x5")
        e("s_nop 0")
        e(f"v_add_f32_dpp v{X}, v{X+1}, v{X+1} row_shr:4 row_mask:0xf bank_mask:0xa")
        e("s_nop 1")
        e(f"v_add_f32_dpp v{X}, v{X}, v{X} quad_perm:[1,0,3,2] {DPPF}")
        e("s_nop 1")
        e(f"v_add_f32_dpp v{X}, v{X}, v{X} quad_perm:[2,3,0,1] {DPPF}")
        bf16r(e, X, X)
        e(f"v_mul_f32 v{X}, {hx(f32(SCALE))}, v{X}")
        bf16r(e, S0+t, X)
        e(f"v_max_f32 v{MX}, v{MX}, v{S0+t}")
    t = 0; since_wo = 0
    while t < 16:
        lag = kvn[0] - 4*t
        if lag >= 4 + W + 4*(catch-1) + 4:
            for _ in range(catch):
                if t < 16: ctile(t); t += 1
            kv_issue()
        elif lag >= 4 + W:
            ctile(t); t += 1
        else:
            kv_issue(); since_wo += 1
            if since_wo >= wo_gap and wo_issue(): since_wo = 0
    while won[0] < 20: assert wo_issue()
    stamp(3)
    allreduce(e, "max", MX, T0, rors=(8, 4))
    e(f"v_mul_f32 v{MX}, {hx(f32(LOG2E))}, v{MX}\ns_mov_b32 s{sT}, {hx(f32(LOG2E))}\nv_mov_b32 v{LS}, 0")
    for t in range(8): e(f"v_fma_f32 v{S0+t}, v{S0+t}, s{sT}, -v{MX}")
    for t in range(8): e(f"v_exp_f32 v{S0+t}, v{S0+t}")
    kv_issue()
    for t in range(8, 16): e(f"v_fma_f32 v{S0+t}, v{S0+t}, s{sT}, -v{MX}")
    for t in range(8, 16): e(f"v_exp_f32 v{S0+t}, v{S0+t}")
    kv_issue()
    for t in range(16):
        e(f"v_add_f32 v{LS}, v{LS}, v{S0+t}\nv_cvt_pk_bf16_f32 v{S0+t}, v{S0+t}, v{S0+t}")
    allreduce(e, "add", LS, T0, rors=(8, 4))
    e(f"s_lshl_b32 s{sT}, s3, 3\nv_mov_b32 v{T0}, s{sT}\nv_mov_b32 v{T1}, 1\nv_mov_b32 v{QF}, 0\ns_mov_b64 exec, 1")
    e(f"ds_write_b64 v{T0}, {d2(MX)} offset:{L_ML}\nds_add_u32 v{QF}, v{T1} offset:{L_SY+12}\ns_mov_b64 exec, -1")
    e(f"v_subrev_u32 v{FL}, s{sU}, v{FL}")
    for r in range(4): e(f"v_mov_b32 v{ACC+r}, 0")
    MLR = QF
    yacc = {}
    def diag(dst, n):
        t, i = (n-64)//4, n % 4
        for w in range(4): e(f"v_and_b32_dpp v{dst+w}, v{S0+t}, v{M[w]} row_newbcast:{4*i} {DPPF}")
    diag(X, 64)
    wdn = 0
    for n in range(64, 128):
        cur = X if n % 2 == 0 else Y; nxt = Y if n % 2 == 0 else X
        if not boost:
            while kvn[0] < min(128, n + (WEND if n + W + 1 > wend_from else W) + 1):
                if not kv_issue(): break
        else:
            while kvn[0] < min(128, n + W + 2):
                m_ = kvn[0]
                if f"kv{m_-W-1}" in e.vm: e.wait(f"kv{m_-W-1}")
                if f"kv{m_-W}" in e.vm:
                    sk = e.label("bs")
                    idx = max(i for i, x in enumerate(e.vm) if x == f"kv{m_-W}")
                    e(f"s_cbranch_vccnz {sk}\ns_waitcnt vmcnt({len(e.vm)-1-idx})")
                    e(f"{sk}:")
                assert kv_issue(paced=False)
            if n % 4 == 0 and n >= 64 + 4*boost_at:
                if n == 64 + 4*boost_at:
                    e(f"v_mov_b32 v{QF}, 0\nds_read_b32 v{QF}, v{QF} offset:{L_SY+16}\ns_waitcnt lgkmcnt(0)\nv_readfirstlane_b32 s{sU2}, v{QF}")
                else:
                    e(f"s_sub_u32 s{sU2}, s{sU2}, 1")
                e(f"s_cmp_gt_i32 s{sU2}, 0\ns_cselect_b64 vcc, -1, 0")
        if n >= 64 + 4*wd_at and wdn < 5 and n % 2 == 0:
            WD[wdn] = pool.get()
            e.vmem(f"buffer_load_dwordx4 {q(WD[wdn])}, v{FL}, s[{SWD}:{SWD+3}], s{sWD} offen offset:{256*wdn}{df}", f"wd{wdn}")
            wdn += 1
        if n + 1 < 128 and n != 64 + 4*ffn_at: diag(nxt, n+1)
        else: e("s_nop 1")
        if f"kv{n}" in e.vm: e.wait(f"kv{n}")
        e(f"v_mfma_f32_16x16x32_bf16 {q(ACC)}, {q(cur)}, {q(slot[n])}, {q(ACC)}")
        pool.put(slot[n])
        if (n - 64) % 16 == 15 and n < 127 - 15: pool.put(S0 + 4*((n-64)//16))
        if n == 64 + 4*ffn_at:
            assert wdn == 5
            e(f"v_mov_b32 v{QF}, 0")
            lds_wait(T1, QF, L_SY+8, f"v_cmp_eq_u32 vcc, 0, v{T1}", 2, "h")
            e(f"v_lshrrev_b32 v{T1}, 4, v{LANE}\nv_lshlrev_b32 v{T1}, 2, v{T1}\ns_lshl_b32 s{sT}, s3, 4\nv_add_u32 v{T1}, s{sT}, v{T1}")
            e(f"ds_read_b32 v{T1}, v{T1} offset:{L_H}")
            e(f"v_and_b32 v{QF}, 8, v{LANE}\nv_cmp_{'eq' if merge else 'ne'}_u32 vcc, 0, v{QF}\ns_waitcnt lgkmcnt(0)\ns_nop 0\nv_cndmask_b32 v{T1}, 0, v{T1}, vcc")
            for w in range(4): e(f"v_and_b32 v{nxt+w}, v{T1}, v{M[w]}")
            if "wd4" in e.vm: e.wait("wd4")
            e("s_nop 1")
            for t in range(5):
                yacc[t] = pool.get()
                e(f"v_mfma_f32_16x16x32_bf16 {q(yacc[t])}, {q(nxt)}, {q(WD[t])}, 0")
                pool.put(WD[t])
            diag(nxt, n+1)
            e("s_nop 1")
            if boost: e(f"s_cmp_gt_i32 s{sU2}, 0\ns_cselect_b64 vcc, -1, 0")
        if n == 64 + 4*coef_at:
            e(f"v_mov_b32 v{QF}, 0")
            lds_wait(T1, QF, L_SY+16, f"v_cmp_eq_u32 vcc, 0, v{T1}", 4, "c")
            e(f"s_lshl_b32 s{sT}, s3, 2\nv_mov_b32 v{T1}, s{sT}\nds_read_b32 v{MX}, v{T1} offset:{L_ML+64}")
            e(f"v_bfe_u32 v{T0}, v{LANE}, 1, 3\nv_lshlrev_b32 v{T0}, 6, v{T0}\nv_and_b32 v{T1}, 1, v{LANE}\nv_lshl_add_u32 v{T0}, v{T1}, 3, v{T0}")
            e(f"v_bfe_u32 v{T1}, v{LANE}, 4, 1\nv_lshl_add_u32 v{T0}, v{T1}, 2, v{T0}\ns_lshl_b32 s{sT}, s3, 9\nv_add_u32 v{T0}, s{sT}, v{T0}")
            e(f"v_lshrrev_b32 v{T1}, 4, v{LANE}\nv_lshlrev_b32 v{T1}, 4, v{T1}\ns_lshl_b32 s{sT}, s3, 6\nv_add_u32 v{T1}, s{sT}, v{T1}")
            e(f"v_and_b32 v{LS}, 8, v{LANE}\nv_cmp_eq_u32 vcc, 0, v{LS}\ns_mul_i32 s{sT}, s3, 5120\nv_add_u32 v{VO}, s{sT}, v{VO}")
            for w in range(4): e(f"v_cndmask_b32 v{QF+w}, 0, v{M[w]}, vcc")
            if merge:
                e(f"s_mul_i32 s{sT}, s3, 24\nv_add_u32 v{LS}, s{sT}, v{LANE}\nv_lshlrev_b32 v{FL}, 4, v{LS}\nv_lshlrev_b32 v{LS}, 2, v{LS}")
            else:
                e(f"v_cmp_lt_u32 vcc, 23, v{LANE}\ns_mul_i32 s{sT}, s3, 24\nv_add_u32 v{LS}, s{sT}, v{LANE}\nv_subrev_u32 v{FL}, 24, v{LS}\nv_cndmask_b32 v{LS}, v{LS}, v{FL}, vcc")
                e(f"v_lshrrev_b32 v{FL}, 1, v{LS}\nv_lshlrev_b32 v{FL}, 6, v{FL}\nv_and_b32 v{VKV}, 1, v{LS}\nv_lshl_add_u32 v{FL}, v{VKV}, 4, v{FL}")
                e(f"v_cndmask_b32 v{VKV}, 0, 32, vcc\nv_add_u32 v{FL}, v{FL}, v{VKV}\nv_lshlrev_b32 v{LS}, 2, v{LS}\nv_mov_b32 v{VKV}, 0xa00\nv_cndmask_b32 v{VKV}, 0, v{VKV}, vcc\nv_add_u32 v{LS}, v{LS}, v{VKV}")
            e(f"v_lshlrev_b32 v{VKV}, 4, v{LANE}")
            e(f"s_mul_i32 s{sU}, s{sROW}, {YROW}\ns_add_u32 s{sU}, s{sU}, {WS_Y}\ns_waitcnt lgkmcnt(0)")
            if boost: e(f"s_cmp_gt_i32 s{sU2}, 0\ns_cselect_b64 vcc, -1, 0")
    stamp(4)
    RB = [S0+12] + [pool.get() for _ in range(8)]
    e("s_nop 7")
    for r in range(4): e(f"v_mul_f32 v{ACC+r}, v{ACC+r}, v{MX}")
    for r in range(4): e(f"ds_write_b32 v{T0}, v{ACC+r} offset:{L_QP+16*r}")
    e("s_waitcnt lgkmcnt(0)\ns_barrier")
    for j in range(8): e(f"ds_read_b128 {q(RB[j])}, v{T1} offset:{L_QP+512*j}")
    for j in range(1, 8):
        e(f"s_waitcnt lgkmcnt({7-j})")
        for r in range(4): e(f"v_add_f32 v{RB[0]+r}, v{RB[0]+r}, v{RB[j]+r}")
    for r in range(4): e(f"v_cvt_pk_bf16_f32 v{RB[0]+r}, v{RB[0]+r}, v{RB[0]+r}")
    if "wo19" in e.vm: e.wait("wo19")
    for rg in range(4):
        cur = X if rg % 2 == 0 else Y
        for w in range(4): e(f"v_and_b32 v{cur+w}, v{RB[0]+rg}, v{QF+w}")
        e("s_nop 1")
        for t in range(5):
            e(f"v_mfma_f32_16x16x32_bf16 {q(yacc[t])}, {q(cur)}, {q(WO[rg*5+t])}, {q(yacc[t])}")
    e("s_nop 3")
    if merge: e("s_mov_b32 exec_hi, 0")
    for t in range(5):
        if t == 4: e("s_nop 3")
        e(f"ds_write_b128 v{VO}, {q(yacc[t])} offset:{L_YP+512*t}")
    e("s_waitcnt lgkmcnt(0)\ns_barrier")
    e("s_mov_b32 exec_lo, 0xffffff" if merge else "s_mov_b32 exec_hi, 0xffff")
    for j in range(9):
        for r in range(3): e(f"ds_read_b32 v{RB[j]+r}, v{LS} offset:{L_YP+5120*j+768*r}")
        if j == 4: e("s_waitcnt lgkmcnt(3)\n" + "\n".join(f"v_add_f32 v{RB[0]+r}, v{RB[0]+r}, v{RB[jj]+r}" for jj in (1, 2, 3) for r in range(3)))
    for j in range(4, 9):
        e(f"s_waitcnt lgkmcnt({3*(8-j)})")
        for r in range(3): e(f"v_add_f32 v{RB[0]+r}, v{RB[0]+r}, v{RB[j]+r}")
    e(f"v_add3_u32 v{RB[0]+3}, v{RB[0]}, v{RB[0]+1}, v{RB[0]+2}\nv_add_u32 v{RB[0]+3}, s{sTAG}, v{RB[0]+3}")
    e(f"buffer_store_dwordx4 {q(RB[0])}, v{FL}, s[{SWS}:{SWS+3}], s{sU} offen sc1")
    if stamps:
        stamp(1)
        e("s_cmp_lg_u32 s3, 0\ns_cbranch_scc1 L_end")
        stamp_store([(0, 0), (1, 1), (2, 2), (3, 3), (4, 4), (5, 6)], 0, X)
        e(f"s_getreg_b32 s{sT}, hwreg(HW_REG_XCC_ID)\ns_getreg_b32 s{sT2}, hwreg(HW_REG_HW_ID)\nv_mov_b32 v{X+2}, s{sT}\nv_mov_b32 v{X+3}, s{sT2}")
        e(f"buffer_store_dwordx2 {d2(X+2)}, v{X}, s[{SWS}:{SWS+3}], 0 offen offset:56")
    e("s_endpgm")

    e.vm = []
    e("L_aux:")
    if aux_prio: e(f"s_setprio {aux_prio}")
    e(f"v_mov_b32 v4, 0\nv_mov_b32 v5, 0\nv_mov_b32 v6, 0\nv_mov_b32 v7, 0\nds_write_b128 v4, v[4:7] offset:{L_SY}\nds_write_b128 v4, v[4:7] offset:{L_SY+16}\ns_waitcnt lgkmcnt(0)\ns_barrier")
    e(f"s_add_u32 s{sEX}, s26, {WS_EP}\ns_addc_u32 s{sEX+1}, s27, 0\ns_load_dword s{sTAG}, s[{sEX}:{sEX+1}], 0")
    GB = 8
    e(f"v_lshlrev_b32 v1, 4, v{LANE}")
    e(f"s_waitcnt lgkmcnt(0)\ns_add_u32 s{sTAG}, s{sTAG}, 1\nv_mov_b32 v3, s{sTAG}")
    e(f"ds_write_b32 v4, v3 offset:{L_QF+256}")
    e(f"s_lshl_b32 s{sT}, s2, 11\ns_add_u32 s{sT}, s{sT}, {WS_P0}\nv_lshlrev_b32 v2, 5, v{LANE}")
    lds_wait(5, 4, L_SY, "v_cmp_ne_u32 vcc, 8, v5", 1, "p")
    for j in range(8): e(f"ds_read_b128 {q(GB+4*j)}, v1 offset:{L_QP+1024*j}")
    for j in range(1, 8):
        e(f"s_waitcnt lgkmcnt({7-j})")
        for r in range(4): e(f"v_add_f32 v{GB+r}, v{GB+r}, v{GB+4*j+r}")
    e(f"v_mov_b32 v{GB+4}, v{GB+2}\nv_mov_b32 v{GB+6}, v{GB+3}\nv_mov_b32 v{GB+2}, v{GB+1}")
    for k in range(4): e(f"v_add_u32 v{GB+2*k+1}, v3, v{GB+2*k}")
    e(f"buffer_store_dwordx4 {q(GB)}, v2, s[{SWS}:{SWS+3}], s{sT} offen sc1")
    e(f"buffer_store_dwordx4 {q(GB+4)}, v2, s[{SWS}:{SWS+3}], s{sT} offen offset:16 sc1")
    stamp(1)
    e(f"v_lshrrev_b32 v5, 5, v{LANE}\nv_lshlrev_b32 v5, 11, v5\nv_and_b32 v6, 31, v{LANE}\nv_lshl_add_u32 v5, v6, 5, v5")
    e(f"s_lshl_b32 s{sT}, s{sH}, 12\ns_lshl_b32 s{sT2}, s{sB}, 10\ns_add_u32 s{sT}, s{sT}, s{sT2}\ns_add_u32 s{sT}, s{sT}, {WS_P0}")
    def spin(loadtxt, cmptxt, sleep, tag):
        ok = e.label(tag+"ok"); lp = e.label(tag+"lp")
        e(f"{lp}:")
        e(loadtxt + "\ns_waitcnt vmcnt(0)")
        e(cmptxt + f"\ns_cbranch_vccz {ok}")
        e(f"s_add_u32 s{sSPIN}, s{sSPIN}, 1\ns_cmp_gt_u32 s{sSPIN}, {SPIN_MAX}\ns_cbranch_scc1 {ok}")
        if sleep: e(f"s_sleep {sleep}")
        e(f"s_branch {lp}")
        e(f"{ok}:")
    QG = GB + 8
    spin(f"buffer_load_dwordx4 {q(QG)}, v5, s[{SWS}:{SWS+3}], s{sT} offen sc1\nbuffer_load_dwordx4 {q(QG+4)}, v5, s[{SWS}:{SWS+3}], s{sT} offen offset:16 sc1",
         "\n".join(f"v_add_u32 v{GB+k}, v3, v{QG+2*k}\nv_xor_b32 v{GB+k}, v{GB+k}, v{QG+2*k+1}" for k in range(4)) + f"\nv_or3_b32 v7, v{GB}, v{GB+1}, v{GB+2}\nv_or_b32 v7, v7, v{GB+3}\nv_cmp_ne_u32 vcc, 0, v7", q_sleep, "q")
    e(f"v_lshlrev_b32 v6, 3, v6")
    for r in range(4): e(f"v_mov_b32 v{GB+r}, v{QG+2*r}\nv_mov_b32 v{GB+4+r}, v{QG+2*r}")
    e("s_nop 1")
    for r in range(4): e(f"v_permlane32_swap_b32 v{GB+r}, v{GB+4+r}")
    e("s_nop 1")
    for r in range(4): e(f"v_add_f32 v{GB+r}, v{GB+r}, v{GB+4+r}")
    e(f"v_cvt_pk_bf16_f32 v{GB}, v{GB}, v{GB+1}\nv_cvt_pk_bf16_f32 v{GB+1}, v{GB+2}, v{GB+3}")
    e(f"ds_write_b64 v6, {d2(GB)} offset:{L_QF}")
    e(f"v_mov_b32 v5, 1\ns_waitcnt lgkmcnt(0)\nds_write_b32 v4, v5 offset:{L_SY+4}")
    stamp(2)
    if dbg: e("s_memrealtime s[66:67]")
    FM = [40, 41, 42, 43]; FX = 44; PG = 48; WDQ = 56; FD = 76
    SWD = SW
    srd(e, SWD, 20, 21, 0 if nowd else 4608*1152)
    e(f"v_lshrrev_b32 v5, 4, v{LANE}\nv_mul_u32_u24 v5, 1152, v5\nv_and_b32 v6, 15, v{LANE}\nv_lshl_add_u32 v5, v6, 4, v5")
    e(f"s_add_u32 s{sT}, s{sF0}, 32\ns_mul_i32 s{sT}, s{sT}, 1152")
    for t in range(5): e(f"buffer_load_dwordx4 {q(WDQ+4*t)}, v5, s[{SWD}:{SWD+3}], s{sT} offen offset:{256*t}{df}")
    e(f"v_min_u32 v5, 35, v{LANE}\nv_add_u32 v5, s{sF0}, v5\nv_lshrrev_b32 v6, 7, v5\nv_lshlrev_b32 v6, 12, v6\nv_and_b32 v5, 127, v5\nv_lshl_add_u32 v5, v5, 3, v6")
    e(f"s_lshl_b32 s{sT}, s{sB}, 10\ns_add_u32 s{sT}, s{sT}, {WS_P0 + 64*2048}\ns_add_u32 s{sT2}, s{sT}, {72*2048}")
    masks(e, FM, LANE, FX, FX+1)
    ld = []; ck = []
    for k, (so, of_) in enumerate(((sT, 0), (sT, 2048), (sT2, 0), (sT2, 2048))):
        ld.append(f"buffer_load_dwordx2 {d2(PG+2*k)}, v5, s[{SWS}:{SWS+3}], s{so} offen offset:{of_} sc1")
        ck.append(f"v_add_u32 v{FX+k}, v3, v{PG+2*k}\nv_xor_b32 v{FX+k}, v{FX+k}, v{PG+2*k+1}")
    ck.append(f"v_or3_b32 v{FX}, v{FX}, v{FX+1}, v{FX+2}\nv_or_b32 v{FX}, v{FX}, v{FX+3}\nv_cmp_ne_u32 vcc, 0, v{FX}")
    spin("\n".join(ld), "\n".join(ck), 8, "d")
    K1 = f32(0.044715); K2 = f32(-2.0*0.7978845608028654*LOG2E)
    g = PG; u = PG+4; a = PG+1
    e(f"s_mov_b32 s{sT}, {hx(K1)}\nv_add_f32 v{g}, v{g}, v{g+2}\nv_add_f32 v{u}, v{u}, v{u+2}")
    bf16r(e, g, g); bf16r(e, u, u)
    e(f"v_mul_f32 v{a}, v{g}, v{g}\nv_fma_f32 v{a}, v{a}, s{sT}, 1.0\nv_mul_f32 v{a}, v{a}, v{g}\nv_mul_f32 v{a}, {hx(K2)}, v{a}")
    e(f"v_exp_f32 v{a}, v{a}\ns_nop 0\nv_add_f32 v{a}, 1.0, v{a}\nv_rcp_f32 v{a}, v{a}\ns_nop 0\nv_mul_f32 v{a}, v{a}, v{g}")
    bf16r(e, a, a)
    e(f"v_mul_f32 v{a}, v{a}, v{u}\nv_cvt_pk_bf16_f32 v{a}, v{a}, v{a}\nv_lshlrev_b32 v5, 2, v{LANE}")
    e(f"ds_write_b32 v5, v{a} offset:{L_H}")
    e(f"v_mov_b32 v6, 1\nv_lshrrev_b32 v5, 4, v{LANE}\nv_lshlrev_b32 v5, 2, v5\ns_waitcnt lgkmcnt(0)\nds_write_b32 v4, v6 offset:{L_SY+8}")
    e(f"ds_read_b32 v5, v5 offset:{L_H+128}")
    e(f"v_and_b32 v6, 8, v{LANE}\nv_cmp_{'eq' if merge else 'ne'}_u32 vcc, 0, v6\ns_waitcnt lgkmcnt(0)\ns_nop 0\nv_cndmask_b32 v5, 0, v5, vcc")
    for w in range(4): e(f"v_and_b32 v{FX+w}, v5, v{FM[w]}")
    e("s_nop 1")
    for t in range(5): e(f"v_mfma_f32_16x16x32_bf16 {q(FD+4*t)}, {q(FX)}, {q(WDQ+4*t)}, 0")
    e(f"v_and_b32 v5, 15, v{LANE}\nv_lshlrev_b32 v5, 5, v5\nv_and_b32 v6, 16, v{LANE}\nv_add_u32 v5, v5, v6\nv_lshrrev_b32 v6, 5, v{LANE}\nv_mul_u32_u24 v6, 2560, v6\nv_add_u32 v5, v5, v6")
    e("s_nop 3")
    for t in range(5): e(f"ds_write_b128 v5, {q(FD+4*t)} offset:{L_YP+8*5120+512*t}")
    stamp(3)
    e("s_waitcnt lgkmcnt(0)")
    A = GB
    e(f"v_and_b32 v5, 7, v{LANE}\nv_lshlrev_b32 v5, 3, v5")
    e(f"s_lshl_b32 s{sT}, s{sBH}, 7\ns_add_u32 s{sT}, s{sT}, {WS_MLW}\ns_lshl_b32 s{sT2}, s{sS}, 4\nv_mov_b32 v6, s{sT2}\nv_and_b32 v7, 3, v{LANE}\nv_lshlrev_b32 v7, 4, v7")
    lds_wait(A, 4, L_SY+12, f"v_cmp_ne_u32 vcc, 8, v{A}", 8, "k")
    if amp: e("s_memrealtime s[72:73]")
    e(f"ds_read_b64 {d2(A)}, v5 offset:{L_ML}\ns_waitcnt lgkmcnt(0)\nv_mov_b32 v{A+4}, v{A}")
    def red8(op, v):
        for pm in ("quad_perm:[1,0,3,2]", "quad_perm:[2,3,0,1]", "row_half_mirror"):
            e(f"s_nop 1\nv_{op}_f32_dpp v{v}, v{v}, v{v} {pm} {DPPF}")
    red8("max", A+4)
    e(f"v_sub_f32 v{A+5}, v{A}, v{A+4}\nv_exp_f32 v{A+5}, v{A+5}\ns_nop 0\nv_mul_f32 v{A+5}, v{A+5}, v{A+1}")
    red8("add", A+5)
    e(f"v_mov_b32 v{A+6}, 0\nv_add3_u32 v{A+7}, v{A+4}, v{A+5}, v3\ns_mov_b64 exec, 1")
    e(f"buffer_store_dwordx4 {q(A+4)}, v6, s[{SWS}:{SWS+3}], s{sT} offen sc1\ns_mov_b64 exec, -1")
    spin(f"buffer_load_dwordx4 {q(A+8)}, v7, s[{SWS}:{SWS+3}], s{sT} offen sc1",
         f"v_add3_u32 v{A+10}, v{A+8}, v{A+9}, v3\nv_cmp_ne_u32 vcc, v{A+10}, v{A+11}", ml_sleep, "m")
    e(f"v_mov_b32 v{A+10}, v{A+8}")
    for pm in ("quad_perm:[1,0,3,2]", "quad_perm:[2,3,0,1]"): e(f"s_nop 1\nv_max_f32_dpp v{A+10}, v{A+10}, v{A+10} {pm} {DPPF}")
    e(f"v_sub_f32 v{A+8}, v{A+8}, v{A+10}\nv_exp_f32 v{A+8}, v{A+8}\nv_sub_f32 v{A}, v{A}, v{A+10}\nv_exp_f32 v{A}, v{A}\nv_mul_f32 v{A+8}, v{A+8}, v{A+9}")
    for pm in ("quad_perm:[1,0,3,2]", "quad_perm:[2,3,0,1]"): e(f"s_nop 1\nv_add_f32_dpp v{A+8}, v{A+8}, v{A+8} {pm} {DPPF}")
    e(f"v_rcp_f32 v{A+8}, v{A+8}\nv_lshrrev_b32 v5, 1, v5\nv_mul_f32 v{A}, v{A}, v{A+8}\nv_mov_b32 v6, 1")
    e(f"ds_write_b32 v5, v{A} offset:{L_ML+64}\ns_waitcnt lgkmcnt(0)\nds_write_b32 v4, v6 offset:{L_SY+16}\ns_waitcnt lgkmcnt(0)")
    if aux_prio: e("s_setprio 0")
    e(f"s_cmp_lt_u32 s2, {2*NFB}\ns_cbranch_scc1 L_fin")
    if stamps: stamp_store([(1, 0), (2, 1), (3, 5)], 1, 44)
    e(f"s_cmp_lg_u32 s2, 255\ns_cbranch_scc1 L_end\ns_mov_b64 exec, -1\nv_lshlrev_b32 v5, 11, v{LANE}\nv_add_u32 v5, {WS_P0}, v5")
    e(f"s_mov_b32 s{sT}, {64*2048}\ns_mov_b32 s{sT2}, {128*2048}\ns_mov_b32 s{sU}, {192*2048}")
    spin("\n".join(f"buffer_load_dwordx2 {d2(GB+2*k)}, v5, s[{SWS}:{SWS+3}], {so} offen sc1" for k, so in enumerate(("0", f"s{sT}", f"s{sT2}", f"s{sU}"))),
         "\n".join(f"v_add_u32 v{GB+2*k}, v3, v{GB+2*k}\nv_xor_b32 v{GB+2*k}, v{GB+2*k}, v{GB+2*k+1}" for k in range(4)) + f"\nv_or3_b32 v7, v{GB}, v{GB+2}, v{GB+4}\nv_or_b32 v7, v7, v{GB+6}\nv_cmp_ne_u32 vcc, 0, v7", 64, "e")
    e(f"v_mov_b32 v2, {WS_EP}\ns_mov_b64 exec, 1")
    e(f"buffer_store_dword v3, v2, s[{SWS}:{SWS+3}], 0 offen sc1")
    e("s_endpgm")
    e("L_fin:")
    sFB, sCB = sB, sH
    e(f"s_cmp_ge_u32 s2, {NFB}\ns_cselect_b32 s{sFB}, 1, 0\ns_mul_i32 s{sT}, s{sFB}, {NFB}\ns_sub_u32 s{sCB}, s2, s{sT}")
    sGB = sKV
    e(f"v_and_b32 v2, {3 if merge else 1}, v{LANE}\nv_lshrrev_b32 v4, 4, v{LANE}\nv_min_u32 v4, 2, v4\nv_mul_u32_u24 v4, 192, v4\nv_add_u32 v2, v2, v4")
    e(f"s_mul_i32 s{sT}, s{sFB}, 576\ns_lshl_b32 s{sT2}, s{sCB}, {2 if merge else 1}\ns_add_u32 s{sT}, s{sT}, s{sT2}")
    e(f"v_add_u32 v2, s{sT}, v2\nv_lshlrev_b32 v6, 1, v2")
    e("global_load_ushort v7, v6, s[4:5]")
    e(f"s_mul_i32 s{sGB}, s{sFB}, {128*YROW}\ns_lshl_b32 s{sT}, s{sCB}, 6\ns_add_u32 s{sGB}, s{sGB}, s{sT}\ns_add_u32 s{sGB}, s{sGB}, {WS_Y}")
    e(f"v_lshrrev_b32 v1, 2, v{LANE}\nv_mul_u32_u24 v1, {YROW}, v1\nv_and_b32 v2, 3, v{LANE}\nv_lshl_add_u32 v1, v2, 4, v1")
    groups = [(GB+4*k, 1, sGB, k*16*YROW) for k in range(8)]
    CK = 44
    e("s_waitcnt vmcnt(0)\nv_lshlrev_b32 v7, 16, v7")
    for k, (g, va, sb, off) in enumerate(groups): e(f"s_add_u32 s{sST+k}, s{sb}, {off}" if not stamps and not dbg and not amp else f"s_add_u32 s{28+k}, s{sb}, {off}")
    SO = sST if not stamps and not dbg and not amp else 28
    e(f"s_mov_b32 s{sEX}, 0")
    e("s_barrier\ns_barrier")
    stamp(4)
    if dbg: e("s_memrealtime s[68:69]")
    for k, (g, va, sb, off) in enumerate(groups): e(f"buffer_load_dwordx4 {q(g)}, v{va}, s[{SWS}:{SWS+3}], s{SO+k} offen sc1")
    lp = e.label("ylp"); ok = e.label("yok")
    e(f"{lp}:")
    e("s_waitcnt vmcnt(0)")
    for k, (g, va, sb, off) in enumerate(groups):
        sk = e.label("ysk"); pd = e.label("ypd")
        e(f"s_bitcmp1_b32 s{sEX}, {k}\ns_cbranch_scc1 {sk}")
        e(f"v_add3_u32 v{CK}, v{g}, v{g+1}, v{g+2}\nv_sub_u32 v{CK}, v{g+3}, v{CK}\nv_xor_b32 v{CK}, v3, v{CK}\ns_nop 1")
        e(f"v_or_b32_dpp v{CK}, v{CK}, v{CK} quad_perm:[1,0,3,2] {DPPF}\ns_nop 1\nv_or_b32_dpp v{CK}, v{CK}, v{CK} quad_perm:[2,3,0,1] {DPPF}")
        e(f"v_cmp_ne_u32 vcc, 0, v{CK}\ns_cbranch_vccnz {pd}\ns_bitset1_b32 s{sEX}, {k}\ns_branch {sk}")
        e(f"{pd}:")
        e(f"s_mov_b64 exec, vcc\nbuffer_load_dwordx4 {q(g)}, v{va}, s[{SWS}:{SWS+3}], s{SO+k} offen sc1\ns_mov_b64 exec, -1")
        e(f"{sk}:")
    e(f"s_cmp_eq_u32 s{sEX}, 0xff\ns_cbranch_scc1 {ok}")
    e(f"s_add_u32 s{sSPIN}, s{sSPIN}, 1\ns_cmp_le_u32 s{sSPIN}, {SPIN_MAX}\ns_cbranch_scc1 {lp}\ns_waitcnt vmcnt(0)")
    e(f"{ok}:")
    for k in range(1, 8):
        for r in range(3): e(f"v_add_f32 v{GB+r}, v{GB+r}, v{GB+4*k+r}")
    e(f"v_mov_b32 v{GB+3}, 0")
    for rr in (4, 8):
        e("s_nop 1")
        for r in range(3): e(f"v_add_f32_dpp v{GB+r}, v{GB+r}, v{GB+r} row_ror:{rr} {DPPF}")
    e("s_nop 1")
    e(f"v_permlane16_swap_b32 v{GB}, v{GB+1}\nv_permlane16_swap_b32 v{GB+2}, v{GB+3}\ns_nop 1")
    e(f"v_add_f32 v{GB}, v{GB}, v{GB+1}\nv_add_f32 v{GB+2}, v{GB+2}, v{GB+3}\ns_nop 1")
    e(f"v_permlane32_swap_b32 v{GB}, v{GB+2}\ns_nop 1")
    e(f"v_add_f32 v{GB}, v{GB}, v{GB+2}")
    if merge:
        e(f"v_add_f32 v{GB}, v7, v{GB}\nv_cvt_pk_bf16_f32 v{GB}, v{GB}, v{GB}")
        e("s_mov_b32 exec_lo, 0x000f000f\ns_mov_b32 exec_hi, 0x0000000f")
    else:
        bf16r(e, GB, GB)
        e("s_nop 1")
        e(f"v_mov_b32_dpp v5, v{GB} quad_perm:[2,3,2,3] {DPPF}")
        e(f"v_add_f32 v{GB}, v7, v{GB}")
        bf16r(e, GB, GB)
        e(f"v_add_f32 v{GB}, v{GB}, v5\nv_cvt_pk_bf16_f32 v{GB}, v{GB}, v{GB}")
        e("s_mov_b32 exec_lo, 0x00030003\ns_mov_b32 exec_hi, 0x00000003")
    e(f"global_store_short v6, v{GB}, s[22:23]")
    e("s_mov_b64 exec, -1")
    if stamps:
        stamp(5)
        stamp_store([(5, 5)], 0, 56)
        stamp_store([(1, 0), (2, 1), (3, 5), (4, 4)], 1, 56)
        e("s_mov_b64 exec, -1")
    if amp:
        e("s_cmp_lg_u32 s2, 0\ns_cbranch_scc1 L_end\ns_memrealtime s[70:71]\ns_waitcnt lgkmcnt(0)")
        e(f"s_sub_u32 s74, s{70 if amp == 1 else 72}, s64\ns_add_u32 s74, s74, s70")
        e("L_amp:\ns_memrealtime s[76:77]\ns_waitcnt lgkmcnt(0)\ns_sub_u32 s75, s76, s74\ns_cmp_lt_i32 s75, 0\ns_cbranch_scc1 L_amp")
    if dbg:
        e("s_cmp_lg_u32 s2, 0\ns_cbranch_scc1 L_end\ns_mov_b64 exec, 1")
        e("s_memrealtime s[70:71]\ns_waitcnt lgkmcnt(0)\ns_sub_u32 s66, s66, s64\ns_sub_u32 s68, s68, s64\ns_sub_u32 s70, s70, s64")
        e("v_mov_b32 v8, s66\nv_mov_b32 v9, s68\nv_mov_b32 v10, s70\nv_mov_b32 v11, s59\nv_mov_b32 v2, 0\nglobal_store_dwordx4 v2, v[8:11], s[24:25]")
    e("L_end:")
    e("s_endpgm")
    e.o.append(f'.section .rodata,"a"\n.p2align 6\n.amdhsa_kernel {KN}')
    e.o.append("  .amdhsa_next_free_vgpr 168\n  .amdhsa_next_free_sgpr 90\n  .amdhsa_accum_offset 168")
    e.o.append("  .amdhsa_group_segment_fixed_size 0\n  .amdhsa_kernarg_size 96\n  .amdhsa_user_sgpr_count 2\n  .amdhsa_user_sgpr_kernarg_segment_ptr 1\n  .amdhsa_system_sgpr_workgroup_id_x 1\n  .amdhsa_float_denorm_mode_32 3\n.end_amdhsa_kernel")
    open(name, "w").write("\n".join(e.o) + "\n")

if __name__ == "__main__":
    b = dict(merge=True, rowint=1, kfill=False)
    gen("parallel_sum__mha_block_cached__geglu_ffn__decode.s", **b)
    gen("k_a.s", stamps=True, **b)
```

```python
import struct, sys
from gen import (KN, f32, hx, HEADER, E, q, d2, DPPF, allreduce, bf16r, ln_norm, masks, srd, LOG2E, SCALE, SPIN_MAX)

WS_Y   = 0x100000
WS_MLW = 0x290000
WS_P0  = 0x2A0000
WS_EP  = 0x330040
WS_SIZE = 0x340000
L_XT = 0; L_QP = 4096; L_QF = 12288; L_H = 12800; L_SY = 13056; L_ML = 13120; L_YP = 13312; L_END = L_YP + 9*5120

DESC = """;
;            diagonal-expanded activation operand); partial sums go through d_ws as {value, check} granules.
"""

class Pool:
    def __init__(s, quads): s.free = list(quads)
    def get(s): return s.free.pop(0)
    def put(s, r): s.free.append(r)

def gen(name, W=3, PRE=26, stamps=False, wo_gap=2, catch=2, aux_prio=3, mlr_at=8, coef_at=13, q_sleep=2, BURST=10,
        y_sleep=0, kf=' nt', vf=' nt', wf='', of='', df='', wd_at=1, ffn_at=5, kfill=True, dbg=False, ysl=(), nocomp=False, nowo=False, noq=False, boost=None, boost_at=1, WEND=3, wend_from=116, nowd=False, nounit=False, ml_sleep=32, WI=3, wi_until=0, prio_hi=False, kfirst=0, WB=9, rowint=0, merge=False, amp=0, rot=0, vrot=0, xmap=0):
    e = E()
    YROW = 3072 if merge else 6144; NFB = 48 if merge else 96
    e.o.append(HEADER.rstrip("\n"))
    e.o.append(f"; @launch grid=(256,1,1) block=(576,1,1) lds={L_END}")
    e.o.append(DESC.rstrip("\n"))
    e.o.append('.amdgcn_target "amdgcn-amd-amdhsa--gfx950"\n.text')
    e.o.append(f".globl {KN}\n.p2align 8\n.type {KN},@function\n{KN}:")
    SK, SV, SW, SX, SWS, SWO = 28, 32, 36, 40, 44, 48
    sH, sB, sS, sBH, sT, sKV, sT2, sSPIN, sROW, sSTR = 52, 53, 54, 55, 56, 57, 58, 59, 60, 61
    sEX = 62; sST = 64; sU = 84; sU2 = 85; sU3 = 86; sTAG = 87; sF0 = 88
    def stamp(i):
        if stamps: e(f"s_memrealtime s[{sST+2*i}:{sST+2*i+1}]")
    def stamp_store(idx_list, region, vt):
        e(f"s_waitcnt lgkmcnt(0)\ns_mov_b64 exec, 1\ns_lshl_b32 s{sT}, s2, 6\ns_add_u32 s{sT}, s{sT}, {16384*region}\nv_mov_b32 v{vt}, s{sT}")
        for i, pos in idx_list:
            e(f"v_mov_b32 v{vt+2}, s{sST+2*i}\nv_mov_b32 v{vt+3}, s{sST+2*i+1}")
            e(f"buffer_store_dwordx2 {d2(vt+2)}, v{vt}, s[{SWS}:{SWS+3}], 0 offen offset:{8*pos}\ns_nop 1")
    def lds_wait(vd, vz, off, cmp, sleep, tag):
        lp = e.label(tag+"w"); ok = e.label(tag+"ok")
        e(f"{lp}:")
        e(f"ds_read_b32 v{vd}, v{vz} offset:{off}\ns_waitcnt lgkmcnt(0)\n{cmp}\ns_cbranch_vccz {ok}")
        e(f"s_add_u32 s{sSPIN}, s{sSPIN}, 1\ns_cmp_gt_u32 s{sSPIN}, {SPIN_MAX*20}\ns_cbranch_scc1 {ok}\ns_sleep {sleep}\ns_branch {lp}")
        e(f"{ok}:")
        e(f"s_mov_b32 s{sSPIN}, 0")
    e("s_cmp_ge_u32 s2, 256\ns_cbranch_scc1 L_end")
    stamp(0)
    if dbg or amp: e("s_memrealtime s[64:65]")
    e("s_load_dwordx16 s[4:19], s[0:1], 0\ns_load_dwordx8 s[20:27], s[0:1], 64")
    e("v_lshrrev_b32 v1, 6, v0\nv_and_b32 v0, 63, v0")
    if xmap == 0:
        e(f"s_and_b32 s{sH}, s2, 31")
        e("v_readfirstlane_b32 s3, v1")
        e(f"s_bfe_u32 s{sB}, s2, 0x10005\ns_lshr_b32 s{sS}, s2, 6")
    elif xmap == 1:
        e(f"s_and_b32 s{sH}, s2, 3\ns_bfe_u32 s{sT}, s2, 0x30003\ns_lshl_b32 s{sT}, s{sT}, 2\ns_add_u32 s{sH}, s{sH}, s{sT}")
        e("v_readfirstlane_b32 s3, v1")
        e(f"s_bfe_u32 s{sB}, s2, 0x10006\ns_bfe_u32 s{sS}, s2, 0x10002\ns_lshl_b32 s{sS}, s{sS}, 1\ns_lshr_b32 s{sT}, s2, 7\ns_add_u32 s{sS}, s{sS}, s{sT}")
    elif xmap == 2:
        e(f"s_and_b32 s{sH}, s2, 1\ns_bfe_u32 s{sT}, s2, 0x40003\ns_lshl_b32 s{sT}, s{sT}, 1\ns_add_u32 s{sH}, s{sH}, s{sT}")
        e("v_readfirstlane_b32 s3, v1")
        e(f"s_lshr_b32 s{sB}, s2, 7\ns_bfe_u32 s{sS}, s2, 0x20001")
    elif xmap == 3:
        e(f"s_bfe_u32 s{sH}, s2, 0x20001\ns_bfe_u32 s{sT}, s2, 0x30003\ns_lshl_b32 s{sT}, s{sT}, 2\ns_add_u32 s{sH}, s{sH}, s{sT}")
        e("v_readfirstlane_b32 s3, v1")
        e(f"s_bfe_u32 s{sB}, s2, 0x10006\ns_and_b32 s{sS}, s2, 1\ns_lshl_b32 s{sS}, s{sS}, 1\ns_lshr_b32 s{sT}, s2, 7\ns_add_u32 s{sS}, s{sS}, s{sT}")
    e(f"s_lshl_b32 s{sBH}, s{sB}, 5\ns_add_u32 s{sBH}, s{sBH}, s{sH}")
    e(f"s_lshl_b32 s{sROW}, s{sBH}, 2\ns_add_u32 s{sROW}, s{sROW}, s{sS}")
    e(f"s_mov_b32 s{sSPIN}, 0\ns_lshr_b32 s{sU}, s2, 1")
    e(f"s_and_b32 s{sF0}, s{sROW}, 127\ns_mul_i32 s{sF0}, s{sF0}, 36")
    e("s_waitcnt lgkmcnt(0)")
    srd(e, SWS, 26, 27, WS_SIZE)
    e("s_cmp_eq_u32 s3, 8\ns_cbranch_scc1 L_aux")

    LANE = 0; VKV = 1; M = [2, 3, 4, 5]; QF = 6; T0 = 10; T1 = 11
    ACC = 12; X = 16; Y = 20; S0 = 24; MX = 164; LS = 165; VO = 166; FL = 167
    pool = Pool(range(40, 164, 4))
    e(f"s_min_u32 s{sU}, s{sU}, 103")
    e(f"s_cmp_lt_u32 s{sU}, 68\ns_cselect_b64 s[{SW}:{SW+1}], s[16:17], s[18:19]\ns_cselect_b32 s{sT}, 32, 68")
    e(f"s_cmp_lt_u32 s{sU}, 32\ns_cselect_b64 s[{SW}:{SW+1}], s[10:11], s[{SW}:{SW+1}]\ns_cselect_b32 s{sT}, 0, s{sT}")
    e(f"s_cselect_b32 s{sSTR}, 8, 9\ns_lshl_b32 s{sSTR}, s{sSTR}, 10\ns_mul_i32 s{SW+2}, s{sSTR}, 576")
    e(f"s_cmp_lt_u32 s2, {0 if nounit else 208}\ns_cselect_b32 s{SW+2}, s{SW+2}, 0\ns_mov_b32 s{SW+3}, 0x20000")
    e(f"s_sub_u32 s{sT}, s{sU}, s{sT}\ns_lshl_b32 s{sT}, s{sT}, 8")
    e(f"s_and_b32 s{sU2}, s2, 1\ns_mul_i32 s{sU2}, s{sU2}, 288\ns_mul_i32 s{sT2}, s3, 36\ns_add_u32 s{sU2}, s{sU2}, s{sT2}")
    sWO = sU3
    e(f"s_mul_i32 s{sT2}, s{sU2}, s{sSTR}\ns_add_u32 s{sWO}, s{sT}, s{sT2}")
    srd(e, SX, 4, 5, 2304)
    xq = [pool.free.pop() for _ in range(8)]
    XA = [xq[0]+i for i in range(4)] + [xq[1]+i for i in range(4)] + [xq[2]]; XO = xq[2]+1
    TMP = [xq[2]+2, xq[2]+3] + [xq[k]+i for k in range(3, 7) for i in range(4)]
    e(f"v_mul_u32_u24 v{T0}, 36, v{LANE}")
    e.vmem(f"buffer_load_dwordx4 {q(xq[0])}, v{T0}, s[{SX}:{SX+3}], 0 offen", "x")
    e.vmem(f"buffer_load_dwordx4 {q(xq[1])}, v{T0}, s[{SX}:{SX+3}], 0 offen offset:16", "x")
    e.vmem(f"buffer_load_dword v{xq[2]}, v{T0}, s[{SX}:{SX+3}], 0 offen offset:32", "x")
    e(f"v_lshrrev_b32 v{T0}, 5, v{LANE}\nv_mul_u32_u24 v{T0}, 1152, v{T0}\nv_and_b32 v{T1}, 31, v{LANE}\nv_lshl_add_u32 v{T0}, v{T1}, 2, v{T0}")
    e(f"s_lshl_b32 s{sT2}, s{sU2}, 1\nv_add_u32 v{T1}, s{sT2}, v{T0}")
    e.vmem(f"buffer_load_dword v{XO}, v{T1}, s[{SX}:{SX+3}], 0 offen", "x")
    VOW = LS
    e(f"v_lshrrev_b32 v{VOW}, 4, v{LANE}\nv_mul_lo_u32 v{VOW}, v{VOW}, s{sSTR}\nv_and_b32 v{FL}, 15, v{LANE}\nv_lshl_add_u32 v{VOW}, v{FL}, 4, v{VOW}")
    e(f"s_lshl_b32 s{sSTR}, s{sSTR}, 2")
    WQ = [pool.free.pop() for _ in range(9)]
    wn = [0]
    def w_issue():
        n = wn[0]; wn[0] += 1
        e.vmem(f"buffer_load_dwordx4 {q(WQ[n])}, v{VOW}, s[{SW}:{SW+3}], s{sWO} offen{wf}", f"w{n}")
        if n < 8: e(f"s_add_u32 s{sWO}, s{sWO}, s{sSTR}")
    for n in range(WB): w_issue()
    srd(e, SK, 6, 7, 0x8000000)
    e(f"v_lshlrev_b32 v{VKV}, 4, v{LANE}")
    e(f"s_lshl_b32 s{sKV}, s{sBH}, 21\ns_lshl_b32 s{sT}, s{sS}, {19 if not rowint else 15 + (rowint-1)}\ns_add_u32 s{sKV}, s{sKV}, s{sT}\ns_lshl_b32 s{sT}, s3, 12\ns_add_u32 s{sKV}, s{sKV}, s{sT}")
    sROT = 89
    if rot: e(f"s_mul_i32 s{sROT}, s{sBH}, {rot}\ns_and_b32 s{sROT}, s{sROT}, 15\ns_lshl_b32 s{sROT}, s{sROT}, 17")
    slot = {}; order = []; kvn = [0]; won = [0]; WO = {}; WD = {}
    def pace():
        w_ = WEND if kvn[0] > wend_from else (WI if kvn[0] <= wi_until else W)
        if len(order) >= w_:
            tg = order[-w_]
            if tg in e.vm: e.wait(tg)
    def kv_issue(paced=True):
        n = kvn[0]
        if n >= 128: return False
        if n >= 4 and not pool.free: return False
        kvn[0] += 1
        slot[n] = S0 + 4*n if n < 4 else pool.get()
        if paced: pace()
        t, i = (n % 64)//4, n % 4
        s = SK if n < 64 else SV
        if rowint:
            g_ = 1 << (rowint-1)
            toff = (t//g_)*4*g_*32768 + (t % g_)*32768
        else: toff = t*32768
        if rot:
            e(f"s_add_u32 s{sT2}, s{sROT}, {toff + (vrot*131072 if n >= 64 and False else 0)}\ns_and_b32 s{sT2}, s{sT2}, 0x1fffff\ns_add_u32 s{sT2}, s{sT2}, s{sKV}")
        else: e(f"s_add_u32 s{sT2}, s{sKV}, {toff}")
        e.vmem(f"buffer_load_dwordx4 {q(slot[n])}, v{VKV}, s[{s}:{s+3}], s{sT2} offen offset:{1024*i}{kf if n < 64 else vf}", f"kv{n}")
        order.append(f"kv{n}")
        return True
    def wo_issue():
        n = won[0]
        if n >= 20 or len(pool.free) < 5: return False
        won[0] += 1
        rg, t = n//5, n % 5
        WO[n] = pool.get()
        if nowo: return True
        e(f"s_movk_i32 s{sT2}, {rg*4608}")
        e.vmem(f"buffer_load_dwordx4 {q(WO[n])}, v{FL}, s[{SWO}:{SWO+3}], s{sT2} offen offset:{t*256}{of}", f"wo{n}")
        return True
    for _ in range(BURST - 9): kv_issue(paced=False)
    e("s_barrier")
    if prio_hi:
        lb = e.label("pr")
        e(f"s_cmp_lt_u32 s3, 4\ns_cbranch_scc1 {lb}\ns_setprio 1")
        e(f"{lb}:")
    srd(e, SV, 8, 9, 0x8000000); srd(e, SWO, 12, 13, 4096*1152)
    masks(e, M, LANE, T0, T1)
    MEAN, SD, RINV = ACC, ACC+1, ACC+2
    e.wait("x")
    for k in range(9):
        e(f"v_lshlrev_b32 v{TMP[2*k]}, 16, v{XA[k]}\nv_and_b32 v{TMP[2*k+1]}, 0xffff0000, v{XA[k]}")
    e(f"v_add_f32 v{MEAN}, v{TMP[0]}, v{TMP[1]}\nv_add_f32 v{SD}, v{TMP[2]}, v{TMP[3]}")
    for k in range(4, 18, 2): e(f"v_add_f32 v{MEAN}, v{MEAN}, v{TMP[k]}\nv_add_f32 v{SD}, v{SD}, v{TMP[k+1]}")
    e(f"v_add_f32 v{MEAN}, v{MEAN}, v{SD}")
    allreduce(e, "add", MEAN, T0, x32=False)
    e(f"v_mul_f32 v{MEAN}, {hx(f32(1.0/576))}, v{MEAN}")
    for k in range(18): e(f"v_sub_f32 v{TMP[k]}, v{TMP[k]}, v{MEAN}")
    e(f"v_mul_f32 v{SD}, v{TMP[0]}, v{TMP[0]}\nv_mul_f32 v{RINV}, v{TMP[1]}, v{TMP[1]}")
    for k in range(2, 18, 2): e(f"v_fmac_f32 v{SD}, v{TMP[k]}, v{TMP[k]}\nv_fmac_f32 v{RINV}, v{TMP[k+1]}, v{TMP[k+1]}")
    e(f"v_add_f32 v{SD}, v{SD}, v{RINV}")
    allreduce(e, "add", SD, T0, x32=False)
    e(f"v_mul_f32 v{SD}, {hx(f32(1.0/576))}, v{SD}")
    bf16r(e, SD, SD)
    e(f"v_add_f32 v{SD}, {hx(f32(1e-5))}, v{SD}")
    bf16r(e, SD, SD)
    e(f"v_sqrt_f32 v{SD}, v{SD}\ns_nop 0")
    bf16r(e, SD, SD)
    e(f"v_rcp_f32 v{RINV}, v{SD}")
    bf16r(e, MEAN, MEAN)
    e(f"v_lshlrev_b32 v{X}, 16, v{XO}\nv_and_b32 v{X+1}, 0xffff0000, v{XO}")
    ln_norm(e, X+2, X, MEAN, SD, RINV, T0, T1)
    ln_norm(e, X+3, X+1, MEAN, SD, RINV, T0, T1)
    e(f"s_lshl_b32 s{sT}, s3, 9")
    e(f"v_lshrrev_b32 v{T0}, 5, v{LANE}\nv_lshlrev_b32 v{T0}, 8, v{T0}\nv_and_b32 v{T1}, 1, v{LANE}\nv_lshl_add_u32 v{T0}, v{T1}, 7, v{T0}")
    e(f"v_bfe_u32 v{T1}, v{LANE}, 1, 4\nv_lshl_add_u32 v{T0}, v{T1}, 2, v{T0}\nv_add_u32 v{T0}, s{sT}, v{T0}")
    e(f"ds_write_b32 v{T0}, v{X+2} offset:{L_XT}\nds_write_b32 v{T0}, v{X+3} offset:{L_XT+64}")
    e(f"v_bfe_u32 v{T0}, v{LANE}, 3, 1\nv_lshlrev_b32 v{T0}, 8, v{T0}\nv_lshrrev_b32 v{T1}, 4, v{LANE}\nv_lshl_add_u32 v{T0}, v{T1}, 6, v{T0}\nv_add_u32 v{T0}, s{sT}, v{T0}")
    e("s_waitcnt lgkmcnt(0)")
    X2 = [xq[3]+i for i in range(4)] + [xq[4]+i for i in range(4)] + [xq[5]]
    e(f"ds_read_b128 {q(xq[3])}, v{T0} offset:{L_XT}\nds_read_b128 {q(xq[4])}, v{T0} offset:{L_XT+16}\nds_read_b32 v{xq[5]}, v{T0} offset:{L_XT+32}")
    for r in range(4): e(f"v_mov_b32 v{ACC+r}, 0")
    e(f"v_and_b32 v{VO}, 15, v{LANE}\nv_lshlrev_b32 v{VO}, 5, v{VO}\nv_and_b32 v{T1}, 16, v{LANE}\nv_add_u32 v{VO}, v{VO}, v{T1}")
    e(f"v_lshrrev_b32 v{T1}, 5, v{LANE}\nv_lshl_add_u32 v{T0}, v{T1}, 9, v{VO}\ns_lshl_b32 s{sT}, s3, 10\nv_add_u32 v{T0}, s{sT}, v{T0}")
    e(f"v_mul_u32_u24 v{T1}, 2560, v{T1}\nv_add_u32 v{VO}, v{VO}, v{T1}")
    for r in (xq[0], xq[1], xq[2], xq[6], xq[7]): pool.put(r)
    e("s_waitcnt lgkmcnt(0)")
    for n in range(9):
        D = X if n % 2 == 0 else Y
        for w in range(4): e(f"v_and_b32 v{D+w}, v{X2[n]}, v{M[w]}")
        if f"w{n}" in e.vm: e.wait(f"w{n}")
        else: e("s_nop 0")
        e("s_nop 0")
        e(f"v_mfma_f32_16x16x32_bf16 {q(ACC)}, {q(D)}, {q(WQ[n])}, {q(ACC)}")
        if wn[0] < 9: w_issue()
        elif kfill: kv_issue(paced=False)
        pool.put(WQ[n])
    for r in (xq[3], xq[4], xq[5]): pool.put(r)
    e(f"v_mov_b32 v{T1}, 1\nv_mov_b32 v{X}, 0")
    e("s_nop 5")
    e(f"ds_write_b128 v{T0}, {q(ACC)} offset:{L_QP}")
    e(f"s_waitcnt lgkmcnt(0)\ns_mov_b64 exec, 1\nds_add_u32 v{X}, v{T1} offset:{L_SY}\ns_mov_b64 exec, -1")
    stamp(5)
    e(f"v_lshrrev_b32 v{T1}, 4, v{LANE}\nv_mul_u32_u24 v{T1}, 1152, v{T1}\nv_and_b32 v{T0}, 15, v{LANE}\nv_lshlrev_b32 v{T0}, 4, v{T0}\nv_add_u32 v{LS}, v{T1}, v{T0}")
    e(f"s_lshl_b32 s{sT}, s{sH}, 7\ns_lshl_b32 s{sT2}, s3, 4\ns_add_u32 s{sT}, s{sT}, s{sT2}\ns_mul_i32 s{sT}, s{sT}, 1152\nv_add_u32 v{FL}, s{sT}, v{LS}")
    SWD = SW
    srd(e, SWD, 20, 21, 0 if nowd else 4608*1152)
    sWD = sU3
    e(f"s_lshl_b32 s{sT}, s3, 2\ns_add_u32 s{sT}, s{sT}, s{sF0}\ns_mul_i32 s{sWD}, s{sT}, 1152\ns_sub_u32 s{sWD}, s{sWD}, 0")
    e(f"v_readfirstlane_b32 s{sU}, v{FL}")
    e(f"v_mov_b32 v{MX}, 0xff800000")
    while kvn[0] < PRE: assert kv_issue()
    lds_wait(T1, X, L_SY+4, f"v_cmp_eq_u32 vcc, 0, v{T1}", 2, "q")
    e(f"ds_read_b128 {q(QF)}, v{T0} offset:{L_QF}\nds_read_b32 v{T1}, v{X} offset:{L_QF+256}")
    stamp(2)
    e("s_waitcnt lgkmcnt(0)")
    e(f"v_readfirstlane_b32 s{sTAG}, v{T1}")
    def ctile(t):
        if f"kv{4*t+3}" in e.vm: e.wait(f"kv{4*t+3}")
        for j in range(4):
            for i in range(4):
                if nocomp: continue
                r = slot[4*t+i] + j
                if j == 0: e(f"v_dot2_f32_bf16 v{X+i}, v{r}, v{QF}, 0")
                else: e(f"v_dot2c_f32_bf16 v{X+i}, v{r}, v{QF+j}")
        if t > 0:
            for i in range(4): pool.put(slot[4*t+i])
        if nocomp: return
        e("s_nop 2")
        e(f"v_add_f32_dpp v{X}, v{X}, v{X} row_ror:8 row_mask:0xf bank_mask:0x3")
        e(f"v_add_f32_dpp v{X}, v{X+2}, v{X+2} row_ror:8 row_mask:0xf bank_mask:0xc")
        e(f"v_add_f32_dpp v{X+1}, v{X+1}, v{X+1} row_ror:8 row_mask:0xf bank_mask:0x3")
        e(f"v_add_f32_dpp v{X+1}, v{X+3}, v{X+3} row_ror:8 row_mask:0xf bank_mask:0xc")
        e("s_nop 0")
        e(f"v_add_f32_dpp v{X}, v{X}, v{X} row_shl:4 row_mask:0xf bank_mask:0x5")
        e("s_nop 0")
        e(f"v_add_f32_dpp v{X}, v{X+1}, v{X+1} row_shr:4 row_mask:0xf bank_mask:0xa")
        e("s_nop 1")
        e(f"v_add_f32_dpp v{X}, v{X}, v{X} quad_perm:[1,0,3,2] {DPPF}")
        e("s_nop 1")
        e(f"v_add_f32_dpp v{X}, v{X}, v{X} quad_perm:[2,3,0,1] {DPPF}")
        bf16r(e, X, X)
        e(f"v_mul_f32 v{X}, {hx(f32(SCALE))}, v{X}")
        bf16r(e, S0+t, X)
        e(f"v_max_f32 v{MX}, v{MX}, v{S0+t}")
    t = 0; since_wo = 0
    while t < 16:
        lag = kvn[0] - 4*t
        if lag >= 4 + W + 4*(catch-1) + 4:
            for _ in range(catch):
                if t < 16: ctile(t); t += 1
            kv_issue()
        elif lag >= 4 + W:
            ctile(t); t += 1
        else:
            kv_issue(); since_wo += 1
            if since_wo >= wo_gap and wo_issue(): since_wo = 0
    while won[0] < 20: assert wo_issue()
    stamp(3)
    allreduce(e, "max", MX, T0, rors=(8, 4))
    e(f"v_mul_f32 v{MX}, {hx(f32(LOG2E))}, v{MX}\ns_mov_b32 s{sT}, {hx(f32(LOG2E))}\nv_mov_b32 v{LS}, 0")
    for t in range(8): e(f"v_fma_f32 v{S0+t}, v{S0+t}, s{sT}, -v{MX}")
    for t in range(8): e(f"v_exp_f32 v{S0+t}, v{S0+t}")
    kv_issue()
    for t in range(8, 16): e(f"v_fma_f32 v{S0+t}, v{S0+t}, s{sT}, -v{MX}")
    for t in range(8, 16): e(f"v_exp_f32 v{S0+t}, v{S0+t}")
    kv_issue()
    for t in range(16):
        e(f"v_add_f32 v{LS}, v{LS}, v{S0+t}\nv_cvt_pk_bf16_f32 v{S0+t}, v{S0+t}, v{S0+t}")
    allreduce(e, "add", LS, T0, rors=(8, 4))
    e(f"s_lshl_b32 s{sT}, s3, 3\nv_mov_b32 v{T0}, s{sT}\nv_mov_b32 v{T1}, 1\nv_mov_b32 v{QF}, 0\ns_mov_b64 exec, 1")
    e(f"ds_write_b64 v{T0}, {d2(MX)} offset:{L_ML}\nds_add_u32 v{QF}, v{T1} offset:{L_SY+12}\ns_mov_b64 exec, -1")
    e(f"v_subrev_u32 v{FL}, s{sU}, v{FL}")
    for r in range(4): e(f"v_mov_b32 v{ACC+r}, 0")
    MLR = QF
    yacc = {}
    def diag(dst, n):
        t, i = (n-64)//4, n % 4
        for w in range(4): e(f"v_and_b32_dpp v{dst+w}, v{S0+t}, v{M[w]} row_newbcast:{4*i} {DPPF}")
    diag(X, 64)
    wdn = 0
    for n in range(64, 128):
        cur = X if n % 2 == 0 else Y; nxt = Y if n % 2 == 0 else X
        if not boost:
            while kvn[0] < min(128, n + (WEND if n + W + 1 > wend_from else W) + 1):
                if not kv_issue(): break
        else:
            while kvn[0] < min(128, n + W + 2):
                m_ = kvn[0]
                if f"kv{m_-W-1}" in e.vm: e.wait(f"kv{m_-W-1}")
                if f"kv{m_-W}" in e.vm:
                    sk = e.label("bs")
                    idx = max(i for i, x in enumerate(e.vm) if x == f"kv{m_-W}")
                    e(f"s_cbranch_vccnz {sk}\ns_waitcnt vmcnt({len(e.vm)-1-idx})")
                    e(f"{sk}:")
                assert kv_issue(paced=False)
            if n % 4 == 0 and n >= 64 + 4*boost_at:
                if n == 64 + 4*boost_at:
                    e(f"v_mov_b32 v{QF}, 0\nds_read_b32 v{QF}, v{QF} offset:{L_SY+16}\ns_waitcnt lgkmcnt(0)\nv_readfirstlane_b32 s{sU2}, v{QF}")
                else:
                    e(f"s_sub_u32 s{sU2}, s{sU2}, 1")
                e(f"s_cmp_gt_i32 s{sU2}, 0\ns_cselect_b64 vcc, -1, 0")
        if n >= 64 + 4*wd_at and wdn < 5 and n % 2 == 0:
            WD[wdn] = pool.get()
            e.vmem(f"buffer_load_dwordx4 {q(WD[wdn])}, v{FL}, s[{SWD}:{SWD+3}], s{sWD} offen offset:{256*wdn}{df}", f"wd{wdn}")
            wdn += 1
        if n + 1 < 128 and n != 64 + 4*ffn_at: diag(nxt, n+1)
        else: e("s_nop 1")
        if f"kv{n}" in e.vm: e.wait(f"kv{n}")
        e(f"v_mfma_f32_16x16x32_bf16 {q(ACC)}, {q(cur)}, {q(slot[n])}, {q(ACC)}")
        pool.put(slot[n])
        if (n - 64) % 16 == 15 and n < 127 - 15: pool.put(S0 + 4*((n-64)//16))
        if n == 64 + 4*ffn_at:
            assert wdn == 5
            e(f"v_mov_b32 v{QF}, 0")
            lds_wait(T1, QF, L_SY+8, f"v_cmp_eq_u32 vcc, 0, v{T1}", 2, "h")
            e(f"v_lshrrev_b32 v{T1}, 4, v{LANE}\nv_lshlrev_b32 v{T1}, 2, v{T1}\ns_lshl_b32 s{sT}, s3, 4\nv_add_u32 v{T1}, s{sT}, v{T1}")
            e(f"ds_read_b32 v{T1}, v{T1} offset:{L_H}")
            e(f"v_and_b32 v{QF}, 8, v{LANE}\nv_cmp_{'eq' if merge else 'ne'}_u32 vcc, 0, v{QF}\ns_waitcnt lgkmcnt(0)\ns_nop 0\nv_cndmask_b32 v{T1}, 0, v{T1}, vcc")
            for w in range(4): e(f"v_and_b32 v{nxt+w}, v{T1}, v{M[w]}")
            if "wd4" in e.vm: e.wait("wd4")
            e("s_nop 1")
            for t in range(5):
                yacc[t] = pool.get()
                e(f"v_mfma_f32_16x16x32_bf16 {q(yacc[t])}, {q(nxt)}, {q(WD[t])}, 0")
                pool.put(WD[t])
            diag(nxt, n+1)
            e("s_nop 1")
            if boost: e(f"s_cmp_gt_i32 s{sU2}, 0\ns_cselect_b64 vcc, -1, 0")
        if n == 64 + 4*coef_at:
            e(f"v_mov_b32 v{QF}, 0")
            lds_wait(T1, QF, L_SY+16, f"v_cmp_eq_u32 vcc, 0, v{T1}", 4, "c")
            e(f"s_lshl_b32 s{sT}, s3, 2\nv_mov_b32 v{T1}, s{sT}\nds_read_b32 v{MX}, v{T1} offset:{L_ML+64}")
            e(f"v_bfe_u32 v{T0}, v{LANE}, 1, 3\nv_lshlrev_b32 v{T0}, 6, v{T0}\nv_and_b32 v{T1}, 1, v{LANE}\nv_lshl_add_u32 v{T0}, v{T1}, 3, v{T0}")
            e(f"v_bfe_u32 v{T1}, v{LANE}, 4, 1\nv_lshl_add_u32 v{T0}, v{T1}, 2, v{T0}\ns_lshl_b32 s{sT}, s3, 9\nv_add_u32 v{T0}, s{sT}, v{T0}")
            e(f"v_lshrrev_b32 v{T1}, 4, v{LANE}\nv_lshlrev_b32 v{T1}, 4, v{T1}\ns_lshl_b32 s{sT}, s3, 6\nv_add_u32 v{T1}, s{sT}, v{T1}")
            e(f"v_and_b32 v{LS}, 8, v{LANE}\nv_cmp_eq_u32 vcc, 0, v{LS}\ns_mul_i32 s{sT}, s3, 5120\nv_add_u32 v{VO}, s{sT}, v{VO}")
            for w in range(4): e(f"v_cndmask_b32 v{QF+w}, 0, v{M[w]}, vcc")
            if merge:
                e(f"s_mul_i32 s{sT}, s3, 24\nv_add_u32 v{LS}, s{sT}, v{LANE}\nv_lshlrev_b32 v{FL}, 4, v{LS}\nv_lshlrev_b32 v{LS}, 2, v{LS}")
            else:
                e(f"v_cmp_lt_u32 vcc, 23, v{LANE}\ns_mul_i32 s{sT}, s3, 24\nv_add_u32 v{LS}, s{sT}, v{LANE}\nv_subrev_u32 v{FL}, 24, v{LS}\nv_cndmask_b32 v{LS}, v{LS}, v{FL}, vcc")
                e(f"v_lshrrev_b32 v{FL}, 1, v{LS}\nv_lshlrev_b32 v{FL}, 6, v{FL}\nv_and_b32 v{VKV}, 1, v{LS}\nv_lshl_add_u32 v{FL}, v{VKV}, 4, v{FL}")
                e(f"v_cndmask_b32 v{VKV}, 0, 32, vcc\nv_add_u32 v{FL}, v{FL}, v{VKV}\nv_lshlrev_b32 v{LS}, 2, v{LS}\nv_mov_b32 v{VKV}, 0xa00\nv_cndmask_b32 v{VKV}, 0, v{VKV}, vcc\nv_add_u32 v{LS}, v{LS}, v{VKV}")
            e(f"v_lshlrev_b32 v{VKV}, 4, v{LANE}")
            e(f"s_mul_i32 s{sU}, s{sROW}, {YROW}\ns_add_u32 s{sU}, s{sU}, {WS_Y}\ns_waitcnt lgkmcnt(0)")
            if boost: e(f"s_cmp_gt_i32 s{sU2}, 0\ns_cselect_b64 vcc, -1, 0")
    stamp(4)
    RB = [S0+12] + [pool.get() for _ in range(8)]
    e("s_nop 7")
    for r in range(4): e(f"v_mul_f32 v{ACC+r}, v{ACC+r}, v{MX}")
    for r in range(4): e(f"ds_write_b32 v{T0}, v{ACC+r} offset:{L_QP+16*r}")
    e("s_waitcnt lgkmcnt(0)\ns_barrier")
    for j in range(8): e(f"ds_read_b128 {q(RB[j])}, v{T1} offset:{L_QP+512*j}")
    for j in range(1, 8):
        e(f"s_waitcnt lgkmcnt({7-j})")
        for r in range(4): e(f"v_add_f32 v{RB[0]+r}, v{RB[0]+r}, v{RB[j]+r}")
    for r in range(4): e(f"v_cvt_pk_bf16_f32 v{RB[0]+r}, v{RB[0]+r}, v{RB[0]+r}")
    if "wo19" in e.vm: e.wait("wo19")
    for rg in range(4):
        cur = X if rg % 2 == 0 else Y
        for w in range(4): e(f"v_and_b32 v{cur+w}, v{RB[0]+rg}, v{QF+w}")
        e("s_nop 1")
        for t in range(5):
            e(f"v_mfma_f32_16x16x32_bf16 {q(yacc[t])}, {q(cur)}, {q(WO[rg*5+t])}, {q(yacc[t])}")
    e("s_nop 3")
    if merge: e("s_mov_b32 exec_hi, 0")
    for t in range(5):
        if t == 4: e("s_nop 3")
        e(f"ds_write_b128 v{VO}, {q(yacc[t])} offset:{L_YP+512*t}")
    e("s_waitcnt lgkmcnt(0)\ns_barrier")
    e("s_mov_b32 exec_lo, 0xffffff" if merge else "s_mov_b32 exec_hi, 0xffff")
    for j in range(9):
        for r in range(3): e(f"ds_read_b32 v{RB[j]+r}, v{LS} offset:{L_YP+5120*j+768*r}")
        if j == 4: e("s_waitcnt lgkmcnt(3)\n" + "\n".join(f"v_add_f32 v{RB[0]+r}, v{RB[0]+r}, v{RB[jj]+r}" for jj in (1, 2, 3) for r in range(3)))
    for j in range(4, 9):
        e(f"s_waitcnt lgkmcnt({3*(8-j)})")
        for r in range(3): e(f"v_add_f32 v{RB[0]+r}, v{RB[0]+r}, v{RB[j]+r}")
    e(f"v_add3_u32 v{RB[0]+3}, v{RB[0]}, v{RB[0]+1}, v{RB[0]+2}\nv_add_u32 v{RB[0]+3}, s{sTAG}, v{RB[0]+3}")
    e(f"buffer_store_dwordx4 {q(RB[0])}, v{FL}, s[{SWS}:{SWS+3}], s{sU} offen sc1")
    if stamps:
        stamp(1)
        e("s_cmp_lg_u32 s3, 0\ns_cbranch_scc1 L_end")
        stamp_store([(0, 0), (1, 1), (2, 2), (3, 3), (4, 4), (5, 6)], 0, X)
        e(f"s_getreg_b32 s{sT}, hwreg(HW_REG_XCC_ID)\ns_getreg_b32 s{sT2}, hwreg(HW_REG_HW_ID)\nv_mov_b32 v{X+2}, s{sT}\nv_mov_b32 v{X+3}, s{sT2}")
        e(f"buffer_store_dwordx2 {d2(X+2)}, v{X}, s[{SWS}:{SWS+3}], 0 offen offset:56")
    e("s_endpgm")

    e.vm = []
    e("L_aux:")
    if aux_prio: e(f"s_setprio {aux_prio}")
    e(f"v_mov_b32 v4, 0\nv_mov_b32 v5, 0\nv_mov_b32 v6, 0\nv_mov_b32 v7, 0\nds_write_b128 v4, v[4:7] offset:{L_SY}\nds_write_b128 v4, v[4:7] offset:{L_SY+16}\ns_waitcnt lgkmcnt(0)\ns_barrier")
    e(f"s_add_u32 s{sEX}, s26, {WS_EP}\ns_addc_u32 s{sEX+1}, s27, 0\ns_load_dword s{sTAG}, s[{sEX}:{sEX+1}], 0")
    GB = 8
    e(f"v_lshlrev_b32 v1, 4, v{LANE}")
    e(f"s_waitcnt lgkmcnt(0)\ns_add_u32 s{sTAG}, s{sTAG}, 1\nv_mov_b32 v3, s{sTAG}")
    e(f"ds_write_b32 v4, v3 offset:{L_QF+256}")
    e(f"s_lshl_b32 s{sT}, s2, 11\ns_add_u32 s{sT}, s{sT}, {WS_P0}\nv_lshlrev_b32 v2, 5, v{LANE}")
    lds_wait(5, 4, L_SY, "v_cmp_ne_u32 vcc, 8, v5", 1, "p")
    for j in range(8): e(f"ds_read_b128 {q(GB+4*j)}, v1 offset:{L_QP+1024*j}")
    for j in range(1, 8):
        e(f"s_waitcnt lgkmcnt({7-j})")
        for r in range(4): e(f"v_add_f32 v{GB+r}, v{GB+r}, v{GB+4*j+r}")
    e(f"v_mov_b32 v{GB+4}, v{GB+2}\nv_mov_b32 v{GB+6}, v{GB+3}\nv_mov_b32 v{GB+2}, v{GB+1}")
    for k in range(4): e(f"v_add_u32 v{GB+2*k+1}, v3, v{GB+2*k}")
    e(f"buffer_store_dwordx4 {q(GB)}, v2, s[{SWS}:{SWS+3}], s{sT} offen sc1")
    e(f"buffer_store_dwordx4 {q(GB+4)}, v2, s[{SWS}:{SWS+3}], s{sT} offen offset:16 sc1")
    stamp(1)
    e(f"v_lshrrev_b32 v5, 5, v{LANE}\nv_lshlrev_b32 v5, 11, v5\nv_and_b32 v6, 31, v{LANE}\nv_lshl_add_u32 v5, v6, 5, v5")
    e(f"s_lshl_b32 s{sT}, s{sH}, 12\ns_lshl_b32 s{sT2}, s{sB}, 10\ns_add_u32 s{sT}, s{sT}, s{sT2}\ns_add_u32 s{sT}, s{sT}, {WS_P0}")
    def spin(loadtxt, cmptxt, sleep, tag):
        ok = e.label(tag+"ok"); lp = e.label(tag+"lp")
        e(f"{lp}:")
        e(loadtxt + "\ns_waitcnt vmcnt(0)")
        e(cmptxt + f"\ns_cbranch_vccz {ok}")
        e(f"s_add_u32 s{sSPIN}, s{sSPIN}, 1\ns_cmp_gt_u32 s{sSPIN}, {SPIN_MAX}\ns_cbranch_scc1 {ok}")
        if sleep: e(f"s_sleep {sleep}")
        e(f"s_branch {lp}")
        e(f"{ok}:")
    QG = GB + 8
    spin(f"buffer_load_dwordx4 {q(QG)}, v5, s[{SWS}:{SWS+3}], s{sT} offen sc1\nbuffer_load_dwordx4 {q(QG+4)}, v5, s[{SWS}:{SWS+3}], s{sT} offen offset:16 sc1",
         "\n".join(f"v_add_u32 v{GB+k}, v3, v{QG+2*k}\nv_xor_b32 v{GB+k}, v{GB+k}, v{QG+2*k+1}" for k in range(4)) + f"\nv_or3_b32 v7, v{GB}, v{GB+1}, v{GB+2}\nv_or_b32 v7, v7, v{GB+3}\nv_cmp_ne_u32 vcc, 0, v7", q_sleep, "q")
    e(f"v_lshlrev_b32 v6, 3, v6")
    for r in range(4): e(f"v_mov_b32 v{GB+r}, v{QG+2*r}\nv_mov_b32 v{GB+4+r}, v{QG+2*r}")
    e("s_nop 1")
    for r in range(4): e(f"v_permlane32_swap_b32 v{GB+r}, v{GB+4+r}")
    e("s_nop 1")
    for r in range(4): e(f"v_add_f32 v{GB+r}, v{GB+r}, v{GB+4+r}")
    e(f"v_cvt_pk_bf16_f32 v{GB}, v{GB}, v{GB+1}\nv_cvt_pk_bf16_f32 v{GB+1}, v{GB+2}, v{GB+3}")
    e(f"ds_write_b64 v6, {d2(GB)} offset:{L_QF}")
    e(f"v_mov_b32 v5, 1\ns_waitcnt lgkmcnt(0)\nds_write_b32 v4, v5 offset:{L_SY+4}")
    stamp(2)
    if dbg: e("s_memrealtime s[66:67]")
    FM = [40, 41, 42, 43]; FX = 44; PG = 48; WDQ = 56; FD = 76
    SWD = SW
    srd(e, SWD, 20, 21, 0 if nowd else 4608*1152)
    e(f"v_lshrrev_b32 v5, 4, v{LANE}\nv_mul_u32_u24 v5, 1152, v5\nv_and_b32 v6, 15, v{LANE}\nv_lshl_add_u32 v5, v6, 4, v5")
    e(f"s_add_u32 s{sT}, s{sF0}, 32\ns_mul_i32 s{sT}, s{sT}, 1152")
    for t in range(5): e(f"buffer_load_dwordx4 {q(WDQ+4*t)}, v5, s[{SWD}:{SWD+3}], s{sT} offen offset:{256*t}{df}")
    e(f"v_min_u32 v5, 35, v{LANE}\nv_add_u32 v5, s{sF0}, v5\nv_lshrrev_b32 v6, 7, v5\nv_lshlrev_b32 v6, 12, v6\nv_and_b32 v5, 127, v5\nv_lshl_add_u32 v5, v5, 3, v6")
    e(f"s_lshl_b32 s{sT}, s{sB}, 10\ns_add_u32 s{sT}, s{sT}, {WS_P0 + 64*2048}\ns_add_u32 s{sT2}, s{sT}, {72*2048}")
    masks(e, FM, LANE, FX, FX+1)
    ld = []; ck = []
    for k, (so, of_) in enumerate(((sT, 0), (sT, 2048), (sT2, 0), (sT2, 2048))):
        ld.append(f"buffer_load_dwordx2 {d2(PG+2*k)}, v5, s[{SWS}:{SWS+3}], s{so} offen offset:{of_} sc1")
        ck.append(f"v_add_u32 v{FX+k}, v3, v{PG+2*k}\nv_xor_b32 v{FX+k}, v{FX+k}, v{PG+2*k+1}")
    ck.append(f"v_or3_b32 v{FX}, v{FX}, v{FX+1}, v{FX+2}\nv_or_b32 v{FX}, v{FX}, v{FX+3}\nv_cmp_ne_u32 vcc, 0, v{FX}")
    spin("\n".join(ld), "\n".join(ck), 8, "d")
    K1 = f32(0.044715); K2 = f32(-2.0*0.7978845608028654*LOG2E)
    g = PG; u = PG+4; a = PG+1
    e(f"s_mov_b32 s{sT}, {hx(K1)}\nv_add_f32 v{g}, v{g}, v{g+2}\nv_add_f32 v{u}, v{u}, v{u+2}")
    bf16r(e, g, g); bf16r(e, u, u)
    e(f"v_mul_f32 v{a}, v{g}, v{g}\nv_fma_f32 v{a}, v{a}, s{sT}, 1.0\nv_mul_f32 v{a}, v{a}, v{g}\nv_mul_f32 v{a}, {hx(K2)}, v{a}")
    e(f"v_exp_f32 v{a}, v{a}\ns_nop 0\nv_add_f32 v{a}, 1.0, v{a}\nv_rcp_f32 v{a}, v{a}\ns_nop 0\nv_mul_f32 v{a}, v{a}, v{g}")
    bf16r(e, a, a)
    e(f"v_mul_f32 v{a}, v{a}, v{u}\nv_cvt_pk_bf16_f32 v{a}, v{a}, v{a}\nv_lshlrev_b32 v5, 2, v{LANE}")
    e(f"ds_write_b32 v5, v{a} offset:{L_H}")
    e(f"v_mov_b32 v6, 1\nv_lshrrev_b32 v5, 4, v{LANE}\nv_lshlrev_b32 v5, 2, v5\ns_waitcnt lgkmcnt(0)\nds_write_b32 v4, v6 offset:{L_SY+8}")
    e(f"ds_read_b32 v5, v5 offset:{L_H+128}")
    e(f"v_and_b32 v6, 8, v{LANE}\nv_cmp_{'eq' if merge else 'ne'}_u32 vcc, 0, v6\ns_waitcnt lgkmcnt(0)\ns_nop 0\nv_cndmask_b32 v5, 0, v5, vcc")
    for w in range(4): e(f"v_and_b32 v{FX+w}, v5, v{FM[w]}")
    e("s_nop 1")
    for t in range(5): e(f"v_mfma_f32_16x16x32_bf16 {q(FD+4*t)}, {q(FX)}, {q(WDQ+4*t)}, 0")
    e(f"v_and_b32 v5, 15, v{LANE}\nv_lshlrev_b32 v5, 5, v5\nv_and_b32 v6, 16, v{LANE}\nv_add_u32 v5, v5, v6\nv_lshrrev_b32 v6, 5, v{LANE}\nv_mul_u32_u24 v6, 2560, v6\nv_add_u32 v5, v5, v6")
    e("s_nop 3")
    for t in range(5): e(f"ds_write_b128 v5, {q(FD+4*t)} offset:{L_YP+8*5120+512*t}")
    stamp(3)
    e("s_waitcnt lgkmcnt(0)")
    A = GB
    e(f"v_and_b32 v5, 7, v{LANE}\nv_lshlrev_b32 v5, 3, v5")
    e(f"s_lshl_b32 s{sT}, s{sBH}, 7\ns_add_u32 s{sT}, s{sT}, {WS_MLW}\ns_lshl_b32 s{sT2}, s{sS}, 4\nv_mov_b32 v6, s{sT2}\nv_and_b32 v7, 3, v{LANE}\nv_lshlrev_b32 v7, 4, v7")
    lds_wait(A, 4, L_SY+12, f"v_cmp_ne_u32 vcc, 8, v{A}", 8, "k")
    if amp: e("s_memrealtime s[72:73]")
    e(f"ds_read_b64 {d2(A)}, v5 offset:{L_ML}\ns_waitcnt lgkmcnt(0)\nv_mov_b32 v{A+4}, v{A}")
    def red8(op, v):
        for pm in ("quad_perm:[1,0,3,2]", "quad_perm:[2,3,0,1]", "row_half_mirror"):
            e(f"s_nop 1\nv_{op}_f32_dpp v{v}, v{v}, v{v} {pm} {DPPF}")
    red8("max", A+4)
    e(f"v_sub_f32 v{A+5}, v{A}, v{A+4}\nv_exp_f32 v{A+5}, v{A+5}\ns_nop 0\nv_mul_f32 v{A+5}, v{A+5}, v{A+1}")
    red8("add", A+5)
    e(f"v_mov_b32 v{A+6}, 0\nv_add3_u32 v{A+7}, v{A+4}, v{A+5}, v3\ns_mov_b64 exec, 1")
    e(f"buffer_store_dwordx4 {q(A+4)}, v6, s[{SWS}:{SWS+3}], s{sT} offen sc1\ns_mov_b64 exec, -1")
    spin(f"buffer_load_dwordx4 {q(A+8)}, v7, s[{SWS}:{SWS+3}], s{sT} offen sc1",
         f"v_add3_u32 v{A+10}, v{A+8}, v{A+9}, v3\nv_cmp_ne_u32 vcc, v{A+10}, v{A+11}", ml_sleep, "m")
    e(f"v_mov_b32 v{A+10}, v{A+8}")
    for pm in ("quad_perm:[1,0,3,2]", "quad_perm:[2,3,0,1]"): e(f"s_nop 1\nv_max_f32_dpp v{A+10}, v{A+10}, v{A+10} {pm} {DPPF}")
    e(f"v_sub_f32 v{A+8}, v{A+8}, v{A+10}\nv_exp_f32 v{A+8}, v{A+8}\nv_sub_f32 v{A}, v{A}, v{A+10}\nv_exp_f32 v{A}, v{A}\nv_mul_f32 v{A+8}, v{A+8}, v{A+9}")
    for pm in ("quad_perm:[1,0,3,2]", "quad_perm:[2,3,0,1]"): e(f"s_nop 1\nv_add_f32_dpp v{A+8}, v{A+8}, v{A+8} {pm} {DPPF}")
    e(f"v_rcp_f32 v{A+8}, v{A+8}\nv_lshrrev_b32 v5, 1, v5\nv_mul_f32 v{A}, v{A}, v{A+8}\nv_mov_b32 v6, 1")
    e(f"ds_write_b32 v5, v{A} offset:{L_ML+64}\ns_waitcnt lgkmcnt(0)\nds_write_b32 v4, v6 offset:{L_SY+16}\ns_waitcnt lgkmcnt(0)")
    if aux_prio: e("s_setprio 0")
    e(f"s_cmp_lt_u32 s2, {2*NFB}\ns_cbranch_scc1 L_fin")
    if stamps: stamp_store([(1, 0), (2, 1), (3, 5)], 1, 44)
    e(f"s_cmp_lg_u32 s2, 255\ns_cbranch_scc1 L_end\ns_mov_b64 exec, -1\nv_lshlrev_b32 v5, 11, v{LANE}\nv_add_u32 v5, {WS_P0}, v5")
    e(f"s_mov_b32 s{sT}, {64*2048}\ns_mov_b32 s{sT2}, {128*2048}\ns_mov_b32 s{sU}, {192*2048}")
    spin("\n".join(f"buffer_load_dwordx2 {d2(GB+2*k)}, v5, s[{SWS}:{SWS+3}], {so} offen sc1" for k, so in enumerate(("0", f"s{sT}", f"s{sT2}", f"s{sU}"))),
         "\n".join(f"v_add_u32 v{GB+2*k}, v3, v{GB+2*k}\nv_xor_b32 v{GB+2*k}, v{GB+2*k}, v{GB+2*k+1}" for k in range(4)) + f"\nv_or3_b32 v7, v{GB}, v{GB+2}, v{GB+4}\nv_or_b32 v7, v7, v{GB+6}\nv_cmp_ne_u32 vcc, 0, v7", 64, "e")
    e(f"v_mov_b32 v2, {WS_EP}\ns_mov_b64 exec, 1")
    e(f"buffer_store_dword v3, v2, s[{SWS}:{SWS+3}], 0 offen sc1")
    e("s_endpgm")
    e("L_fin:")
    sFB, sCB = sB, sH
    e(f"s_cmp_ge_u32 s2, {NFB}\ns_cselect_b32 s{sFB}, 1, 0\ns_mul_i32 s{sT}, s{sFB}, {NFB}\ns_sub_u32 s{sCB}, s2, s{sT}")
    sGB = sKV
    e(f"v_and_b32 v2, {3 if merge else 1}, v{LANE}\nv_lshrrev_b32 v4, 4, v{LANE}\nv_min_u32 v4, 2, v4\nv_mul_u32_u24 v4, 192, v4\nv_add_u32 v2, v2, v4")
    e(f"s_mul_i32 s{sT}, s{sFB}, 576\ns_lshl_b32 s{sT2}, s{sCB}, {2 if merge else 1}\ns_add_u32 s{sT}, s{sT}, s{sT2}")
    e(f"v_add_u32 v2, s{sT}, v2\nv_lshlrev_b32 v6, 1, v2")
    e("global_load_ushort v7, v6, s[4:5]")
    e(f"s_mul_i32 s{sGB}, s{sFB}, {128*YROW}\ns_lshl_b32 s{sT}, s{sCB}, 6\ns_add_u32 s{sGB}, s{sGB}, s{sT}\ns_add_u32 s{sGB}, s{sGB}, {WS_Y}")
    e(f"v_lshrrev_b32 v1, 2, v{LANE}\nv_mul_u32_u24 v1, {YROW}, v1\nv_and_b32 v2, 3, v{LANE}\nv_lshl_add_u32 v1, v2, 4, v1")
    groups = [(GB+4*k, 1, sGB, k*16*YROW) for k in range(8)]
    CK = 44
    e("s_waitcnt vmcnt(0)\nv_lshlrev_b32 v7, 16, v7")
    for k, (g, va, sb, off) in enumerate(groups): e(f"s_add_u32 s{sST+k}, s{sb}, {off}" if not stamps and not dbg and not amp else f"s_add_u32 s{28+k}, s{sb}, {off}")
    SO = sST if not stamps and not dbg and not amp else 28
    e(f"s_mov_b32 s{sEX}, 0")
    e("s_barrier\ns_barrier")
    stamp(4)
    if dbg: e("s_memrealtime s[68:69]")
    for k, (g, va, sb, off) in enumerate(groups): e(f"buffer_load_dwordx4 {q(g)}, v{va}, s[{SWS}:{SWS+3}], s{SO+k} offen sc1")
    lp = e.label("ylp"); ok = e.label("yok")
    e(f"{lp}:")
    e("s_waitcnt vmcnt(0)")
    for k, (g, va, sb, off) in enumerate(groups):
        sk = e.label("ysk"); pd = e.label("ypd")
        e(f"s_bitcmp1_b32 s{sEX}, {k}\ns_cbranch_scc1 {sk}")
        e(f"v_add3_u32 v{CK}, v{g}, v{g+1}, v{g+2}\nv_sub_u32 v{CK}, v{g+3}, v{CK}\nv_xor_b32 v{CK}, v3, v{CK}\ns_nop 1")
        e(f"v_or_b32_dpp v{CK}, v{CK}, v{CK} quad_perm:[1,0,3,2] {DPPF}\ns_nop 1\nv_or_b32_dpp v{CK}, v{CK}, v{CK} quad_perm:[2,3,0,1] {DPPF}")
        e(f"v_cmp_ne_u32 vcc, 0, v{CK}\ns_cbranch_vccnz {pd}\ns_bitset1_b32 s{sEX}, {k}\ns_branch {sk}")
        e(f"{pd}:")
        e(f"s_mov_b64 exec, vcc\nbuffer_load_dwordx4 {q(g)}, v{va}, s[{SWS}:{SWS+3}], s{SO+k} offen sc1\ns_mov_b64 exec, -1")
        e(f"{sk}:")
    e(f"s_cmp_eq_u32 s{sEX}, 0xff\ns_cbranch_scc1 {ok}")
    e(f"s_add_u32 s{sSPIN}, s{sSPIN}, 1\ns_cmp_le_u32 s{sSPIN}, {SPIN_MAX}\ns_cbranch_scc1 {lp}\ns_waitcnt vmcnt(0)")
    e(f"{ok}:")
    for k in range(1, 8):
        for r in range(3): e(f"v_add_f32 v{GB+r}, v{GB+r}, v{GB+4*k+r}")
    e(f"v_mov_b32 v{GB+3}, 0")
    for rr in (4, 8):
        e("s_nop 1")
        for r in range(3): e(f"v_add_f32_dpp v{GB+r}, v{GB+r}, v{GB+r} row_ror:{rr} {DPPF}")
    e("s_nop 1")
    e(f"v_permlane16_swap_b32 v{GB}, v{GB+1}\nv_permlane16_swap_b32 v{GB+2}, v{GB+3}\ns_nop 1")
    e(f"v_add_f32 v{GB}, v{GB}, v{GB+1}\nv_add_f32 v{GB+2}, v{GB+2}, v{GB+3}\ns_nop 1")
    e(f"v_permlane32_swap_b32 v{GB}, v{GB+2}\ns_nop 1")
    e(f"v_add_f32 v{GB}, v{GB}, v{GB+2}")
    if merge:
        e(f"v_add_f32 v{GB}, v7, v{GB}\nv_cvt_pk_bf16_f32 v{GB}, v{GB}, v{GB}")
        e("s_mov_b32 exec_lo, 0x000f000f\ns_mov_b32 exec_hi, 0x0000000f")
    else:
        bf16r(e, GB, GB)
        e("s_nop 1")
        e(f"v_mov_b32_dpp v5, v{GB} quad_perm:[2,3,2,3] {DPPF}")
        e(f"v_add_f32 v{GB}, v7, v{GB}")
        bf16r(e, GB, GB)
        e(f"v_add_f32 v{GB}, v{GB}, v5\nv_cvt_pk_bf16_f32 v{GB}, v{GB}, v{GB}")
        e("s_mov_b32 exec_lo, 0x00030003\ns_mov_b32 exec_hi, 0x00000003")
    e(f"global_store_short v6, v{GB}, s[22:23]")
    e("s_mov_b64 exec, -1")
    if stamps:
        stamp(5)
        stamp_store([(5, 5)], 0, 56)
        stamp_store([(1, 0), (2, 1), (3, 5), (4, 4)], 1, 56)
        e("s_mov_b64 exec, -1")
    if amp:
        e("s_cmp_lg_u32 s2, 0\ns_cbranch_scc1 L_end\ns_memrealtime s[70:71]\ns_waitcnt lgkmcnt(0)")
        e(f"s_sub_u32 s74, s{70 if amp == 1 else 72}, s64\ns_add_u32 s74, s74, s70")
        e("L_amp:\ns_memrealtime s[76:77]\ns_waitcnt lgkmcnt(0)\ns_sub_u32 s75, s76, s74\ns_cmp_lt_i32 s75, 0\ns_cbranch_scc1 L_amp")
    if dbg:
        e("s_cmp_lg_u32 s2, 0\ns_cbranch_scc1 L_end\ns_mov_b64 exec, 1")
        e("s_memrealtime s[70:71]\ns_waitcnt lgkmcnt(0)\ns_sub_u32 s66, s66, s64\ns_sub_u32 s68, s68, s64\ns_sub_u32 s70, s70, s64")
        e("v_mov_b32 v8, s66\nv_mov_b32 v9, s68\nv_mov_b32 v10, s70\nv_mov_b32 v11, s59\nv_mov_b32 v2, 0\nglobal_store_dwordx4 v2, v[8:11], s[24:25]")
    e("L_end:")
    e("s_endpgm")
    e.o.append(f'.section .rodata,"a"\n.p2align 6\n.amdhsa_kernel {KN}')
    e.o.append("  .amdhsa_next_free_vgpr 168\n  .amdhsa_next_free_sgpr 90\n  .amdhsa_accum_offset 168")
    e.o.append("  .amdhsa_group_segment_fixed_size 0\n  .amdhsa_kernarg_size 96\n  .amdhsa_user_sgpr_count 2\n  .amdhsa_user_sgpr_kernarg_segment_ptr 1\n  .amdhsa_system_sgpr_workgroup_id_x 1\n  .amdhsa_float_denorm_mode_32 3\n.end_amdhsa_kernel")
    open(name, "w").write("\n".join(e.o) + "\n")

if __name__ == "__main__":
    b = dict(merge=True, rowint=1, kfill=False)
    gen("parallel_sum__mha_block_cached__geglu_ffn__decode.s", **b)
```
